```python
import torch

def _softmax(x, axis=-1):
    return torch.softmax(x, dim=axis)

def _gelu(x):
    return torch.nn.functional.gelu(x, approximate='tanh')

def _silu(x):
    return torch.nn.functional.silu(x)

def _sigmoid(x):
    return torch.sigmoid(x)

def _layernorm(x, axis=-1, eps=1e-05):
    m = x.mean(dim=axis, keepdim=True)
    v = x.var(dim=axis, keepdim=True, unbiased=False)
    return (x - m) / torch.sqrt(v + eps)

def _scatter_add(tgt, idx, src, axis=0):
    return tgt.clone().index_add_(axis, idx, src)

def _segment_sum(src, seg, n):
    out = torch.zeros((n,) + src.shape[1:], dtype=src.dtype)
    return out.index_add_(0, seg, src)

def _pad(x, pw):
    flat = tuple((v for pair in reversed(pw) for v in pair))
    return torch.nn.functional.pad(x, flat)
kernel_name = 'sequential_preLN__sliding_local_dilated__mixer_gmlp__prompt'

def setup_inputs():

    _w = lambda a: (lambda t: t.to(torch.bfloat16) if t.is_floating_point() else t)(torch.as_tensor(a))

    def _A_setup():
        B, S, D = (1, 2048, 1024)
        return {'x': _w((lambda *s: torch.randn(*s, dtype=torch.bfloat16) * 0.05)(B, S, D)), 'wqkv': _w((lambda *s: torch.randn(*s, dtype=torch.bfloat16) * 0.05)(D, 3 * D)), 'wo': _w((lambda *s: torch.randn(*s, dtype=torch.bfloat16) * 0.05)(D, D))}
    _A_in = _A_setup()

    def _B_setup():
        B, S, D, F = (1, 2048, 1024, 3584)
        Fh = F // 2
        return {'x': _w((lambda *s: torch.randn(*s, dtype=torch.bfloat16) * 0.05)(B, S, D)), 'w_in': _w((lambda *s: torch.randn(*s, dtype=torch.bfloat16) * 0.4)(D, 2 * Fh)), 'w_sp': _w(0.01 * (lambda *s: torch.randn(*s, dtype=torch.bfloat16) * 0.4)(S, S)), 'b_sp': _w(1.0 + 0.01 * (lambda *s: torch.randn(*s, dtype=torch.bfloat16) * 0.05)(S)), 'w_out': _w((lambda *s: torch.randn(*s, dtype=torch.bfloat16) * 0.05)(Fh, D))}
    _B_in = _B_setup()
    return {'A_x': _A_in['x'], 'A_wqkv': _A_in['wqkv'], 'A_wo': _A_in['wo'], 'B_x': _B_in['x'], 'B_w_in': _B_in['w_in'], 'B_w_sp': _B_in['w_sp'], 'B_b_sp': _B_in['b_sp'], 'B_w_out': _B_in['w_out']}

def reference(A_x, A_wqkv, A_wo, B_x, B_w_in, B_w_sp, B_b_sp, B_w_out):

    def _A_ref(x, wqkv, wo):
        B, S, D = x.shape
        H = 32
        Dh = D // H
        W, dil = (8, 2)
        qkv = (lambda x, *d: x.permute(*d))((x @ wqkv).reshape(B, S, 3, H, Dh), 2, 0, 3, 1, 4)
        q, k, v = (qkv[0], qkv[1], qkv[2])
        scale = Dh ** (-0.5)
        pos = torch.arange(S)
        off = torch.arange(W) * dil
        idx = pos[:, None] - off[None, :]
        mask = idx >= 0
        idx_c = torch.where(mask, idx, 0).reshape(-1)
        kg = k[:, :, idx_c, :].reshape(B, H, S, W, Dh)
        vg = v[:, :, idx_c, :].reshape(B, H, S, W, Dh)
        logits = torch.einsum('bhsd,bhswd->bhsw', q, kg) * scale
        logits = torch.where(mask[None, None, :, :], logits, -1000000000.0)
        attn = _softmax(logits, axis=-1)
        o = torch.einsum('bhsw,bhswd->bhsd', attn, vg)
        return (lambda x, *d: x.permute(*d))(o, 0, 2, 1, 3).reshape(B, S, D) @ wo

    def _B_ref(x, w_in, w_sp, b_sp, w_out):
        B, S, D = x.shape
        F = w_in.shape[-1]
        Fh = F // 2
        z = _gelu(torch.einsum('bsd,df->bsf', x, w_in))
        z1 = z[..., :Fh].clone()
        z2 = _layernorm(z[..., Fh:], axis=-1)
        g = torch.einsum('ts,bsf->btf', w_sp, z2) + b_sp[None, :, None]
        return torch.einsum('bsf,fd->bsd', z1 * g, w_out)
    x = A_x
    h = x + _A_ref(_layernorm(x, axis=-1), A_wqkv, A_wo)
    h2 = h + _B_ref(_layernorm(h, axis=-1), B_w_in, B_w_sp, B_b_sp, B_w_out)
    return h2
```

```python
import re

REG = re.compile(r'\b([vas])\[(\d+):(\d+)\]|\b([vas])(\d+)\b|\b(vcc|exec|m0|scc)\b')

def regs_of(tok):
    out = []
    for m in REG.finditer(tok):
        if m.group(1):
            out += [(m.group(1), i) for i in range(int(m.group(2)), int(m.group(3)) + 1)]
        elif m.group(4):
            out.append((m.group(4), int(m.group(5))))
        else:
            out.append((m.group(6), 0))
    return out

TRANS = ('v_exp_f32', 'v_log_f32', 'v_rcp_f32', 'v_rsq_f32', 'v_sqrt_f32', 'v_sin_f32', 'v_cos_f32')

def base(op):
    return re.sub(r'_(e32|e64|dpp|sdwa)$', '', op)

def split_ops(rest):
    ops = []; depth = 0; cur = ''
    for ch in rest:
        if ch == '[': depth += 1
        if ch == ']': depth -= 1
        if ch == ',' and depth == 0:
            ops.append(cur.strip()); cur = ''
        else:
            cur += ch
    if cur.strip(): ops.append(cur.strip())
    return ops

class I:
    __slots__ = ('op', 'kind', 'dst', 'src', 'dpp', 'text', 'passes', 'srcC', 'storedata', 'ldsdma')

def parse(line):
    t = line.split(';')[0].strip()
    if not t or t.endswith(':') or t.startswith('.'):
        return None
    p = t.split(None, 1)
    op = p[0]; rest = p[1] if len(p) > 1 else ''
    i = I(); i.op = op; i.text = t; i.dpp = False; i.passes = 0; i.srcC = []; i.storedata = []; i.ldsdma = False
    ops = split_ops(rest)
    mods = ''
    if ops:
        toks = ops[-1].split()
        if len(toks) > 1:
            ops[-1] = toks[0]; mods = ' '.join(toks[1:])
    R = lambda k: regs_of(ops[k]) if k < len(ops) else []
    allsrc = lambda k0: [r for k in range(k0, len(ops)) for r in regs_of(ops[k])]
    if op.startswith('v_mfma'):
        i.kind = 'mfma'; i.dst = R(0); i.src = R(1) + R(2) + R(3); i.srcC = R(3)
        i.passes = 4 if '16x16x32' in op else (8 if '32x32x16' in op else 16)
    elif op.startswith('v_cmp'):
        i.kind = 'valu'; i.dst = R(0); i.src = allsrc(1)
        if op.startswith('v_cmpx'): i.dst = i.dst + [('exec', 0)]
    elif op in ('v_readfirstlane_b32', 'v_readlane_b32'):
        i.kind = 'valu'; i.dst = R(0); i.src = allsrc(1)
    elif op.startswith('v_permlane'):
        i.kind = 'valu'; i.dst = R(0) + R(1); i.src = R(0) + R(1)
    elif op.startswith('v_add_co') or op.startswith('v_sub_co') or op.startswith('v_addc_co') or op.startswith('v_subb_co'):
        i.kind = 'valu'; i.dst = R(0) + R(1); i.src = allsrc(2)
    elif op.startswith('v_'):
        i.kind = 'valu'; i.dst = R(0); i.src = allsrc(1)
        if op.startswith(('v_fmac', 'v_dot2c', 'v_pk_fmac', 'v_mac')) or op == 'v_writelane_b32':
            i.src = i.src + R(0)
        if op.startswith('v_cndmask') and len(ops) == 3:
            i.src = i.src + [('vcc', 0)]
        if '_dpp' in op or 'row_' in mods or 'quad_perm' in mods:
            i.dpp = True
            if 'bound_ctrl' not in mods: i.src = i.src + R(0)
    elif op.startswith(('buffer_load', 'global_load')):
        i.kind = 'vmem'
        if ' lds' in (' ' + mods) or mods.endswith('lds'):
            i.ldsdma = True; i.dst = []; i.src = allsrc(0) + [('m0', 0)]
        else:
            i.dst = R(0); i.src = allsrc(1)
    elif op.startswith(('buffer_store', 'global_store')):
        i.kind = 'vmem'; i.dst = []; i.src = allsrc(0)
        if op.startswith('buffer_store'):
            d = R(0)
        else:
            d = R(1)
        if len(d) >= 3: i.storedata = d
    elif op.startswith(('buffer_atomic', 'global_atomic')):
        i.kind = 'vmem'; i.dst = R(0) if 'sc0' in mods else []; i.src = allsrc(0)
    elif op.startswith('buffer_') :
        i.kind = 'vmem'; i.dst = []; i.src = []
    elif op.startswith('ds_read') or op.startswith('ds_bpermute') or op.startswith('ds_swizzle') or op.startswith('ds_permute'):
        i.kind = 'ds'; i.dst = R(0); i.src = allsrc(1)
    elif op.startswith('ds_'):
        i.kind = 'ds'; i.dst = []; i.src = allsrc(0)
    elif op == 's_nop':
        i.kind = 'nop'; i.dst = []; i.src = []
    elif op.startswith('s_cmp') or op.startswith('s_bitcmp'):
        i.kind = 'salu'; i.dst = [('scc', 0)]; i.src = allsrc(0)
    elif op.startswith(('s_cbranch', 's_branch', 's_barrier', 's_waitcnt', 's_endpgm', 's_setprio', 's_sleep')):
        i.kind = 'ctl'; i.dst = []; i.src = []
    elif op.startswith('s_load') or op.startswith('s_mem'):
        i.kind = 'smem'; i.dst = R(0); i.src = allsrc(1)
    elif op.startswith('s_'):
        i.kind = 'salu'; i.dst = R(0); i.src = allsrc(1)
        if 'saveexec' in op: i.dst = i.dst + [('exec', 0)]
    else:
        raise ValueError("unknown instr " + t)
    return i

def isvec(r): return r[0] in ('v', 'a')
def issg(r): return r[0] in ('s', 'vcc')

def need(prev, cur):
    n = 0
    pd = set(prev.dst)
    if prev.kind == 'valu':
        vd = {r for r in pd if isvec(r)}
        sd = {r for r in pd if issg(r)}
        if vd:
            cs = set(cur.src)
            if cur.kind == 'mfma' and vd & cs: n = max(n, 2)
            if cur.kind == 'valu':
                if cur.op.startswith('v_permlane') and vd & cs: n = max(n, 2)
                if cur.dpp and vd & cs: n = max(n, 2)
                if cur.op in ('v_readfirstlane_b32', 'v_readlane_b32') and vd & cs: n = max(n, 1)
                if base(prev.op) in TRANS and vd & cs and base(cur.op) not in TRANS: n = max(n, 1)
                if base(prev.op) in TRANS and vd & cs: n = max(n, 1)
            if base(prev.op) in TRANS and cur.kind in ('vmem', 'ds') and vd & cs: n = max(n, 1)
        if sd:
            cs = set(cur.src)
            if cur.kind == 'valu' and sd & cs: n = max(n, 4 if cur.op in ('v_readlane_b32', 'v_writelane_b32') else 2)
            if cur.kind == 'vmem' and sd & cs: n = max(n, 5)
            if cur.kind in ('salu', 'smem') and sd & cs: n = max(n, 4)
            if cur.kind == 'ctl' and ('vcc', 0) in sd and 'vcc' in cur.op: n = max(n, 5)
        if ('exec', 0) in pd:
            if cur.kind == 'valu' and cur.dpp: n = max(n, 5)
            if cur.kind == 'mfma': n = max(n, 4)
            if cur.kind == 'valu' and cur.op.startswith(('v_readlane', 'v_readfirstlane', 'v_writelane', 'v_permlane')): n = max(n, 4)
    if prev.kind == 'salu':
        if ('m0', 0) in pd and cur.ldsdma: n = max(n, 1)
        if ('exec', 0) in pd and cur.kind == 'valu' and cur.dpp: n = max(n, 5)
    if prev.kind == 'mfma':
        P = prev.passes
        far = {4: 8, 8: 12, 16: 20}[P]
        over = {4: 6, 8: 10, 16: 18}[P]
        war = {4: 3, 8: 7, 16: 15}[P]
        cs = set(cur.src); cd = set(cur.dst)
        if cur.kind == 'mfma':
            ab = set(cur.src) - set(cur.srcC)
            ab = set([r for r in cur.src[:len(cur.src) - len(cur.srcC)]])
            if pd & ab: n = max(n, far)
            c = set(cur.srcC)
            if pd & c and (c != pd or cur.passes != P): n = max(n, over)
            if pd & cd and not (pd & c): n = max(n, over)
        elif cur.kind in ('valu', 'vmem', 'ds'):
            if pd & (cs | cd): n = max(n, far)
            if cur.kind == 'valu' and set(prev.srcC) & cd: n = max(n, war)
    if prev.storedata:
        if cur.kind == 'valu' and set(prev.storedata) & set(cur.dst): n = max(n, 2)
        elif set(prev.storedata) & set(cur.dst): n = max(n, 1)
    return n

WINDOW = 21

def fix(lines):
    out = []
    hist = []
    pos = 0
    stats = 0
    for line in lines:
        ins = parse(line)
        if ins is None:
            out.append(line); continue
        mo = re.search(r'offset:(\d+)', ins.text)
        if mo and ins.op.startswith('buffer_'):
            assert int(mo.group(1)) < 4096, "buffer offset too large: " + line
        if mo and ins.op.startswith('ds_') and 'swizzle' not in ins.op:
            assert int(mo.group(1)) < 65536, "ds offset too large: " + line
        if ins.kind == 'nop':
            out.append(line); pos += int(ins.text.split()[1], 0) + 1; continue
        req = 0
        for (p, ppos) in hist:
            d = pos - ppos - 1
            if d >= WINDOW: continue
            n = need(p, ins)
            if n > d: req = max(req, n - d)
        while req > 0:
            c = min(req, 16)
            out.append(f"    s_nop {c-1}")
            pos += c; req -= c; stats += 1
        out.append(line)
        hist.append((ins, pos)); pos += 1
        if len(hist) > 64: hist = [h for h in hist if pos - h[1] <= WINDOW + 1]
    return out, stats
```

```python
O_OFF   = 0x0000000
H_OFF   = 0x0400000
Z2T_OFF = 0x0800000
U_OFF   = 0x1000000
ST1_OFF = 0x1800000
CS1_OFF = 0x1810000
CS3_OFF = 0x1850000
ST2_OFF = 0x18A0000
ST3_OFF = 0x1900000
FLG_OFF = 0x1A00000
EPOCH_OFF = 0x1A40000
DBG_OFF = 0x2000000
STAMP_OFF = 0x4000000
WS_USED = 0x8000000
F_S1R = 0
F_S1C = 1
F_G1  = 2
F_G2  = 3
F_S3C = 4
F_Z2S = 5
F_G3  = 6
F_G4  = 7
def flag_off(fid, grp, idx=0):
    return FLG_OFF + fid * 2048 + grp * 128 + idx * 4
```

```python
class Kern:
    def __init__(self, name):
        self.name = name
        self.lines = []
        self.nlab = 0
        self.vgpr_max = 0
        self.nvgpr = 256
        self.accum = 256
        self.nsgpr = 102
        self.wgy = False

    def o(self, s):
        self.lines.append("    " + s)

    def c(self, s):
        self.lines.append("    ; " + s)

    def lab(self, l):
        self.lines.append(l + ":")

    def newlab(self, base="L"):
        self.nlab += 1
        return f"{self.name}_{base}{self.nlab}"

    def text(self):
        h = []
        h.append(f".globl {self.name}")
        h.append(".p2align 8")
        h.append(f".type {self.name},@function")
        h.append(f"{self.name}:")
        return "\n".join(h + self.lines) + "\n"

    def desc(self):
        d = []
        d.append(".p2align 6")
        d.append(f".amdhsa_kernel {self.name}")
        d.append(f"  .amdhsa_next_free_vgpr {self.nvgpr}")
        d.append(f"  .amdhsa_next_free_sgpr {self.nsgpr}")
        d.append(f"  .amdhsa_accum_offset {self.accum}")
        d.append("  .amdhsa_group_segment_fixed_size 0")
        d.append("  .amdhsa_kernarg_size 88")
        d.append("  .amdhsa_user_sgpr_count 2")
        d.append("  .amdhsa_user_sgpr_kernarg_segment_ptr 1")
        d.append("  .amdhsa_system_sgpr_workgroup_id_x 1")
        if self.wgy:
            d.append("  .amdhsa_system_sgpr_workgroup_id_y 1")
        d.append("  .amdhsa_float_denorm_mode_32 3")
        d.append(".end_amdhsa_kernel")
        return "\n".join(d) + "\n"


def vr(b, n=1):
    return f"v{b}" if n == 1 else f"v[{b}:{b+n-1}]"

def ar(b, n=1):
    return f"a{b}" if n == 1 else f"a[{b}:{b+n-1}]"

def sr(b, n=1):
    return f"s{b}" if n == 1 else f"s[{b}:{b+n-1}]"


HEADER = """; Kernarg layout for this problem (88 bytes, ptrs only, base s[0:1]):
"""


def build_file(kerns_launches):
    out = [HEADER]
    for k, g, b, lds in kerns_launches:
        out.append(f"; @launch kernel={k.name} grid=({g[0]},{g[1]},{g[2]}) block=({b[0]},{b[1]},{b[2]}) lds={lds}\n")
    out.append('.amdgcn_target "amdgcn-amd-amdhsa--gfx950"\n.text\n')
    seen = []
    for k, _, _, _ in kerns_launches:
        if k not in seen:
            seen.append(k)
    for k in seen:
        out.append(k.text())
    out.append('.section .rodata,"a"\n')
    for k in seen:
        out.append(k.desc())
    return "".join(out)
```

```python
import sys, struct
from asmlib import *
from hazard import fix
from layout import *

LOG2E = 1.4426950408889634
def f2u(x): return struct.unpack('<I', struct.pack('<f', x))[0]

P_X, P_WQKV, P_WO, P_BX, P_WIN, P_WSP, P_BSP, P_WOUT, P_OUT, P_DBG, P_WS = 4, 6, 8, 10, 12, 14, 16, 18, 20, 22, 24
S_I, S_M, S_H, S_JS, S_WAVE, S_TAG = 26, 27, 28, 29, 30, 31
R_WS, R_X, R_W, R_M = 32, 36, 40, 44
S_P = 48
S_J3 = 49
STAMP0 = 70
SPIN_MAX = 200000
WSR = f"s[{R_WS}:{R_WS+3}]"

class Q:
    def __init__(self, g): self.g = g; self.q = []; self.un = {}
    def issue(self, tag): self.q.append(tag)
    def untracked(self, tag): self.un[tag] = len(self.q)
    def wait(self, tag):
        idx = max([i for i, t in enumerate(self.q) if t == tag], default=None)
        if idx is None: return
        n = len(self.q) - 1 - idx
        assert n <= 63, n
        self.g.o(f"s_waitcnt vmcnt({n})")
        self.pop(idx + 1)
    def pop(self, cnt):
        self.q = self.q[cnt:]
        self.un = {t: max(0, p - cnt) for t, p in self.un.items()}
    def wait_un(self, tag):
        p = self.un.pop(tag)
        n = len(self.q) - p
        self.g.o(f"s_waitcnt vmcnt({n})")
    def drain(self):
        self.g.o("s_waitcnt vmcnt(0)"); self.q = []; self.un = {}


class Ring:
    def __init__(self, name, ns, base, slot, srd, sstep, sc=""):
        self.name = name; self.ns = ns; self.base = base; self.slot = slot; self.srd = srd; self.sstep = sstep; self.sc = sc
        self.instrs = []
        self.soff0 = 0
        self.sk = None
        self.nk = 16


class Gen:
    def __init__(self, stamps=False, upto=5, opts=()):
        self.opts = set(opts)
        self.k = Kern("mega_kernel")
        self.k.nvgpr = 256; self.k.accum = 160; self.k.nsgpr = 102
        self.stamps = stamps; self.upto = upto
        self.nstamp = {'c': 0, 'p': 0}
    def o(self, s): self.k.o(s)
    def lab(self, s): self.k.lab(s)
    def nl(self, b="L"): return self.k.newlab(b)

    def stamp(self, who):
        if not self.stamps: return
        n = self.nstamp[who]; self.nstamp[who] += 1
        assert n < 15, "too many stamps"
        self.o(f"{'s_memtime' if 'cyc' in self.opts else 's_memrealtime'} s[{STAMP0+2*n}:{STAMP0+2*n+1}]")

    def srd(self, r, ptr, nbytes):
        o = self.o
        o(f"s_mov_b32 s{r}, s{ptr}"); o(f"s_and_b32 s{r+1}, s{ptr+1}, 0xffff")
        o(f"s_mov_b32 s{r+2}, {nbytes}"); o(f"s_mov_b32 s{r+3}, 0x20000")

    def interleave(self, mf, others, span=None):
        n = len(mf); m = len(others); span = min(span or n, n)
        oi = 0
        for i, s in enumerate(mf):
            self.o(s)
            tgt = min(m, -(-((i + 1) * m) // span))
            while oi < tgt:
                self.o(others[oi]); oi += 1
        while oi < m:
            self.o(others[oi]); oi += 1

    def bfly(self, op, xs, ts, bits=(5, 4, 3, 2, 1, 0)):
        o = self.o
        for b in bits:
            if b >= 4:
                pm = "v_permlane32_swap_b32" if b == 5 else "v_permlane16_swap_b32"
                for x, t in zip(xs, ts): o(f"v_mov_b32 v{t}, v{x}")
                for x, t in zip(xs, ts): o(f"{pm} v{x}, v{t}")
                for x, t in zip(xs, ts): o(f"{op} v{x}, v{x}, v{t}")
            else:
                for x in xs: o(f"{op}_dpp v{x}, v{x}, v{x} row_ror:{1 << b} row_mask:0xf bank_mask:0xf")

    def prologue(self):
        o = self.o
        o("s_cmp_ge_u32 s2, 256"); o("s_cbranch_scc1 mega_done")
        o("s_load_dwordx16 s[4:19], s[0:1], 0")
        o("s_load_dwordx4 s[20:23], s[0:1], 64")
        o("s_load_dwordx2 s[24:25], s[0:1], 80")
        if self.stamps: o(f"{'s_memtime' if 'cyc' in self.opts else 's_memrealtime'} s[68:69]")
        o("s_and_b32 s50, s2, 7"); o("s_lshr_b32 s51, s2, 3")
        o("s_and_b32 s52, s50, 3"); o("s_lshl_b32 s52, s52, 2"); o("s_and_b32 s53, s51, 3"); o(f"s_add_u32 s{S_I}, s52, s53")
        o(f"s_lshr_b32 s{S_JS}, s51, 2"); o(f"s_lshr_b32 s{S_H}, s50, 2")
        o(f"s_lshl_b32 s52, s{S_H}, 3"); o(f"s_add_u32 s{S_M}, s52, s{S_JS}")
        o(f"s_mul_i32 s52, s{S_H}, 7"); o(f"s_add_u32 s{S_J3}, s52, s{S_JS}")
        o("v_lshrrev_b32 v1, 6, v0"); o(f"v_readfirstlane_b32 s{S_WAVE}, v1")
        o("v_and_b32 v1, 63, v0")
        o("s_waitcnt lgkmcnt(0)")
        self.srd(R_WS, P_WS, WS_USED)
        o(f"s_cmp_ge_u32 s{S_WAVE}, 4"); o("s_cbranch_scc1 mega_prod")

    def spread(self, mf, others, start=0, per=1):
        o = self.o
        n = len(mf); m = len(others)
        gaps = n - start
        need = -(-m // gaps) if gaps > 0 else m
        per = max(per, need)
        oi = 0
        for i, s in enumerate(mf):
            o(s)
            if i >= start:
                for _ in range(per):
                    if oi < m:
                        o(others[oi]); oi += 1
        while oi < m:
            o(others[oi]); oi += 1

    def cons_loop(self, name, NK, reads, mfmas, adv_regs, span0=None, span1=None, cont=False, next_reads=None):
        o = self.o
        if not cont:
            for (regs, ns, sb, sidx, sdel) in adv_regs: o(f"s_mov_b32 s{sidx}, 0")
            o("s_barrier")
            for s in reads(0, 0): o(s)
            o("s_waitcnt lgkmcnt(0)")
        o("s_mov_b32 s64, 0")
        if next_reads is not None:
            self._loop_body(name, NK - 1, reads, mfmas, adv_regs, reads(0, 0), True)
            self._loop_body(name + "_last", 1, reads, mfmas, adv_regs, next_reads, False)
        else:
            self._loop_body(name, NK, reads, mfmas, adv_regs, reads(0, 0), True)

    def _loop_body(self, name, NK, reads, mfmas, adv_regs, rd_next, loop):
        o = self.o
        self.lab(name)
        sal = []; upd = []
        for (regs, ns, sb, sidx, sdel) in adv_regs:
            sal += [f"s_add_u32 s{sidx}, s{sidx}, 1", f"s_cmp_eq_u32 s{sidx}, {ns}", f"s_mov_b32 s{sdel}, {sb}",
                    f"s_cselect_b32 s{sdel}, {(-(ns-1)*sb) & 0xffffffff}, s{sdel}", f"s_cselect_b32 s{sidx}, 0, s{sidx}"]
            upd += [f"v_add_u32 v{r}, s{sdel}, v{r}" for r in regs]
        sal += ["s_add_u32 s64, s64, 1"]
        m0 = mfmas(0); r1 = reads(1, 1)
        if len(r1) + len(sal) <= len(m0):
            self.spread(m0, r1 + sal)
        else:
            mix = []
            si = 0
            for i, r in enumerate(r1):
                mix.append(r)
            mix += sal
            self.spread(m0, mix)
        o("s_waitcnt lgkmcnt(0)")
        o("s_barrier")
        if callable(rd_next):
            pre, rd = rd_next()
            self.spread(mfmas(1), upd + pre + rd)
        else:
            self.spread(mfmas(1), upd + rd_next)
        if loop: o(f"s_cmp_lt_u32 s64, {NK}")
        o("s_waitcnt lgkmcnt(0)")
        if loop: o(f"s_cbranch_scc1 {name}")

    def addr_k(self, dst, const, sreg=None):
        o = self.o
        o("v_lshrrev_b32 v4, 1, v3"); o("v_xor_b32 v4, v2, v4"); o("v_lshlrev_b32 v4, 4, v4")
        o("v_lshlrev_b32 v5, 7, v3"); o(f"v_add_u32 v{dst}, v4, v5")
        if const: o(f"v_add_u32 v{dst}, {const}, v{dst}")
        if sreg is not None: o(f"v_add_u32 v{dst}, s{sreg}, v{dst}")
        o(f"v_xor_b32 v{dst+1}, 64, v{dst}")
    def addr_n(self, dsts, ps, const, sreg=None):
        o = self.o
        o("v_lshrrev_b32 v4, 2, v3"); o("v_and_b32 v5, 3, v3")
        o("v_lshrrev_b32 v6, 1, v4"); o("v_and_b32 v7, 1, v2"); o("v_lshlrev_b32 v7, 1, v7"); o("v_or_b32 v6, v6, v7")
        o("v_lshlrev_b32 v7, 3, v2"); o("v_add_u32 v7, v7, v4"); o("v_lshlrev_b32 v7, 7, v7"); o("v_lshlrev_b32 v12, 3, v5"); o("v_add_u32 v7, v7, v12")
        o(f"v_add_u32 v7, {const}, v7")
        if sreg is not None: o(f"v_add_u32 v7, s{sreg}, v7")
        for d, p in zip(dsts, ps):
            src = f"s{p[1]}" if isinstance(p, tuple) else str(p)
            o(f"v_xor_b32 v12, {src}, v6"); o("v_lshlrev_b32 v12, 5, v12"); o(f"v_add_u32 v{d}, v12, v7")

    def voff_k(self, dst, row_s, row_add, jpar, ld_shift=None, ld_s=None, clamp=False):
        o = self.o
        if isinstance(jpar, tuple):
            o(f"s_and_b32 s62, s{jpar[1]}, 1"); o("s_lshl_b32 s62, s62, 2"); o("v_or_b32 v5, s62, v4")
        else:
            o(f"v_or_b32 v5, {(jpar & 1) << 2}, v4")
        o("v_xor_b32 v5, v5, v3"); o("v_lshlrev_b32 v5, 4, v5")
        o(f"v_add_u32 v6, s{row_s}, v2")
        if row_add: o(f"v_add_u32 v6, {row_add}, v6")
        if clamp: o("v_max_i32 v6, 0, v6")
        if ld_shift is not None: o(f"v_lshlrev_b32 v6, {ld_shift}, v6")
        else: o(f"v_mul_lo_u32 v6, v6, s{ld_s}")
        o(f"v_add_u32 v{dst}, v6, v5")
    def voff_n(self, dst, kk, col_s, ld_s):
        o = self.o
        o(f"v_add_u32 v6, {8*kk}, v2"); o(f"v_mul_lo_u32 v6, v6, s{ld_s}"); o(f"v_add_u32 v6, s{col_s}, v6")
        o("v_and_b32 v7, 1, v4"); o(f"v_or_b32 v7, {(kk & 1) << 1}, v7"); o("v_lshlrev_b32 v7, 1, v7")
        o("v_xor_b32 v7, v7, v3"); o("v_lshlrev_b32 v7, 4, v7"); o(f"v_add_u32 v{dst}, v6, v7")

    def ring_init(self, R, sk, nk, rot_s):
        o = self.o
        R.sk = sk; R.nk = nk
        o(f"s_mul_i32 s{sk}, s{rot_s}, {R.sstep}")
        if R.soff0: o(f"s_add_u32 s{sk}, s{sk}, {R.soff0}")

    def rot_compute(self, dst, nk):
        o = self.o
        if 'norot' in self.opts:
            o(f"s_mov_b32 s{dst}, 0"); return
        o(f"s_lshl_b32 s{dst}, s{S_JS}, 1"); o(f"s_and_b32 s50, s{S_I}, 3"); o("s_lshl_b32 s50, s50, 2"); o(f"s_add_u32 s{dst}, s{dst}, s50")
        o(f"s_lshr_b32 s50, s{S_I}, 2"); o(f"s_add_u32 s{dst}, s{dst}, s50"); o(f"s_and_b32 s{dst}, s{dst}, 15")
        if nk >= 28:
            o(f"s_mul_i32 s{dst}, s{dst}, {nk}"); o(f"s_lshr_b32 s{dst}, s{dst}, 4")

    def ring_issue(self, q, R, st, soff_reg=None):
        o = self.o
        for (sreg, imm, voff) in R.instrs:
            if 'nodma' in self.opts and st >= 3: continue
            o(f"s_add_u32 m0, s{sreg}, {R.base + (st % R.ns) * R.slot + imm}")
            o(f"buffer_load_dwordx4 v{voff}, s[{R.srd}:{R.srd+3}], s{R.sk} offen {R.sc} lds".replace("  ", " "))
            q.issue(f"{R.name}{st}")
        o(f"s_add_u32 s{R.sk}, s{R.sk}, {R.sstep}")
        o(f"s_cmp_eq_u32 s{R.sk}, {R.soff0 + R.nk * R.sstep}")
        o(f"s_cselect_b32 s{R.sk}, {R.soff0}, s{R.sk}")

    def prod_loop(self, q, NK, rings, hooks=None, pre_hooks=None, st_at=()):
        o = self.o
        hooks = hooks or {}; pre_hooks = pre_hooks or {}
        for R in rings: q.wait(f"{R.name}0")
        o("s_barrier")
        for kq in range(NK):
            if kq + 1 < NK:
                for R in rings: q.wait(f"{R.name}{kq+1}")
            if kq in pre_hooks: pre_hooks[kq]()
            o("s_barrier")
            if kq in st_at: self.stamp('p')
            for ri, R in enumerate(rings):
                if kq + R.ns < NK: self.ring_issue(q, R, kq + R.ns, 60 + ri)
            if kq in hooks: hooks[kq]()

    def p0_only(self):
        l = self.nl("skip")
        self.o(f"s_cmp_lg_u32 s{S_P}, 0"); self.o(f"s_cbranch_scc1 {l}")
        return l

    def flag_store(self, fid, grp_s, idx_s):
        o = self.o
        l = self.p0_only()
        o(f"s_lshl_b32 s50, s{grp_s}, 7"); o(f"s_lshl_b32 s51, s{idx_s}, 2"); o("s_add_u32 s50, s50, s51")
        o(f"s_add_u32 s50, s50, {FLG_OFF + fid*2048}")
        o(f"v_mov_b32 v8, s{S_TAG}"); o("v_mov_b32 v9, 0")
        o("s_mov_b64 s[52:53], exec"); o("s_mov_b64 exec, 1")
        o(f"buffer_store_dword v8, v9, {WSR}, s50 offen sc1")
        o("s_mov_b64 exec, s[52:53]")
        self.lab(l)

    def poll(self, groups):
        o = self.o
        l = self.p0_only()
        o("v_and_b32 v8, 15, v1"); o("v_lshlrev_b32 v8, 2, v8")
        mask = 0
        for gi, (fid, grp_s, m16) in enumerate(groups):
            o(f"s_lshl_b32 s50, s{grp_s}, 7"); o(f"s_add_u32 s50, s50, {FLG_OFF + fid*2048}")
            if gi == 0: o("v_mov_b32 v9, s50")
            else:
                o("v_mov_b32 v7, s50"); o(f"v_cmp_le_u32 vcc, {gi}, v4"); o("v_cndmask_b32 v9, v9, v7, vcc")
            mask |= m16 << (16 * gi)
        o("v_add_u32 v8, v8, v9")
        lo, hi = mask & 0xffffffff, mask >> 32
        lp = self.nl("spin"); ok = self.nl("ok")
        o("s_mov_b32 s52, 0")
        self.lab(lp)
        o(f"buffer_load_dword v9, v8, {WSR}, 0 offen sc1")
        o("s_waitcnt vmcnt(0)")
        o(f"v_cmp_eq_u32 vcc, s{S_TAG}, v9")
        o(f"s_and_b32 s50, vcc_lo, {lo:#x}"); o(f"s_and_b32 s51, vcc_hi, {hi:#x}")
        o(f"s_xor_b32 s50, s50, {lo:#x}"); o(f"s_xor_b32 s51, s51, {hi:#x}"); o("s_or_b32 s50, s50, s51")
        o("s_cmp_eq_u32 s50, 0"); o(f"s_cbranch_scc1 {ok}")
        o("s_sleep 1")
        o("s_add_u32 s52, s52, 1"); o(f"s_cmp_lt_u32 s52, {SPIN_MAX}"); o(f"s_cbranch_scc1 {lp}")
        self.lab(ok)
        self.lab(l)

    def colsum_job(self, q, srd, ld_s, col_s, krow_s, dst_s, tag):
        o = self.o
        B = 64
        def loads():
            o(f"v_add_u32 v22, s{krow_s}, v2"); o(f"v_mul_lo_u32 v22, v22, s{ld_s}"); o("v_lshlrev_b32 v23, 4, v3"); o("v_add_u32 v22, v22, v23")
            o(f"s_lshl_b32 s53, s{ld_s}, 3")
            o(f"s_mov_b32 s54, s{col_s}")
            for u in range(8):
                o(f"buffer_load_dwordx4 v[{B+4*u}:{B+4*u+3}], v22, s[{srd}:{srd+3}], s54 offen"); q.issue(tag)
                if u < 7: o("s_add_u32 s54, s54, s53")
        def comp(u0, u1):
            def f():
                o("s_mov_b32 s52, 0x00003f80"); o("s_mov_b32 s53, 0x3f800000")
                for u in range(u0, u1):
                    for e in range(4):
                        if u == 0:
                            o(f"v_lshlrev_b32 v{96+2*e}, 16, v{B+e}"); o(f"v_and_b32 v{97+2*e}, 0xffff0000, v{B+e}")
                        else:
                            o(f"v_dot2c_f32_bf16 v{96+2*e}, s52, v{B+4*u+e}"); o(f"v_dot2c_f32_bf16 v{97+2*e}, s53, v{B+4*u+e}")
            return f
        def fin():
            for j in range(4): o(f"v_permlane32_swap_b32 v{96+2*j}, v{97+2*j}")
            for j in range(4): o(f"v_add_f32 v{104+j}, v{96+2*j}, v{97+2*j}")
            for j in range(2): o(f"v_permlane16_swap_b32 v{104+2*j}, v{105+2*j}")
            for j in range(2): o(f"v_add_f32 v{96+j}, v{104+2*j}, v{105+2*j}")
            for j in range(2): o(f"v_add_f32_dpp v{96+j}, v{96+j}, v{96+j} row_ror:8 row_mask:0xf bank_mask:0xf")
            o("v_lshrrev_b32 v98, 4, v1"); o("v_and_b32 v99, 1, v98"); o("v_lshlrev_b32 v99, 1, v99"); o("v_lshrrev_b32 v98, 1, v98"); o("v_or_b32 v98, v98, v99")
            o("v_lshlrev_b32 v99, 3, v3"); o("v_add_u32 v98, v98, v99")
            o("v_and_b32 v99, 8, v1"); o("v_lshrrev_b32 v100, 1, v99"); o("v_add_u32 v98, v98, v100"); o("v_lshlrev_b32 v98, 2, v98")
            o("v_cmp_ne_u32 vcc, 0, v99"); o("v_cndmask_b32 v96, v96, v97, vcc")
            o(f"buffer_store_dword v96, v98, {WSR}, s{dst_s} offen sc1"); q.issue(tag + 'st')
        return loads, comp, fin

    G1_XB, G1_XS, G1_WB, G1_WS = 8192, 18432, 63488, 24576
    def g1_consumer(self, wm):
        o = self.o
        ACC = 16
        VX0, VW0 = 8, 10
        def acc(wf, r): return ACC + (wf * 4 + r) * 4
        HAL = ACC + 96
        def fx(st, f): return ar(st * 44 + f * 4, 4)
        def fw(st, wf, h=None):
            b = st * 44 + 20 + wf * 4
            return ar(b, 4) if h is None else ar(b + 2 * h, 2)
        self.addr_k(VX0, self.G1_XB)
        o(f"s_lshr_b32 s50, s{S_WAVE}, 1"); o("s_lshl_b32 s50, s50, 1"); o("s_add_u32 s51, s50, 1")
        self.addr_n([VW0, VW0 + 1], [('s', 50), ('s', 51)], self.G1_WB)
        for r in range(104): o(f"v_mov_b32 v{ACC+r}, 0")
        def reads(st, j):
            vx = VX0 + j
            xs = [f"ds_read_b128 {fx(st, r)}, v{vx} offset:{(1+4*wm+r)*2048}" for r in range(4)]
            xh = f"ds_read_b128 {fx(st, 4)}, v{vx} offset:0"
            W = []
            for wf in range(6):
                qq, pp = wf >> 1, wf & 1
                W.append([f"ds_read_b64_tr_b16 {fw(st, wf, h)}, v{VW0+pp} offset:{qq*8192+j*4096+h*512}" for h in range(2)])
            return [xs[0]] + W[0] + [xs[1]] + W[1] + [xs[2], xs[3]] + W[2] + W[3] + [xh] + W[4] + W[5]
        def mfmas(st):
            L = []
            for wf in range(6):
                for r in range(4):
                    a = vr(acc(wf, r), 4)
                    if wf < 4: L.append(f"v_mfma_f32_16x16x32_bf16 {a}, {fw(st, wf)}, {fx(st, r)}, {a}")
                    else:      L.append(f"v_mfma_f32_16x16x32_bf16 {a}, {fx(st, r)}, {fw(st, wf)}, {a}")
                if wf == 3 and wm == 0:
                    for t in range(2):
                        a = vr(HAL + 4 * t, 4); L.append(f"v_mfma_f32_16x16x32_bf16 {a}, {fw(st, 2+t)}, {fx(st, 4)}, {a}")
            if wm == 1:
                for t in range(2):
                    a = vr(HAL + 4 * t, 4); L.append(f"v_mfma_f32_16x16x32_bf16 {a}, {fx(st, 4)}, {fw(st, 4+t)}, {a}")
            return L
        self.cons_loop(f"g1_loop{wm}", 16, reads, mfmas,
                       [([VX0, VX0 + 1], 3, self.G1_XS, 65, 66), ([VW0, VW0 + 1], 3, self.G1_WS, 67, 62)], span0=21, span1=23)
        self.stamp('c')
        ST_A, ST_B, CS, EX = 0, 576, 1152, 2048
        TA = 140; VS = [120, 130]
        o("v_lshlrev_b32 v4, 2, v3"); o("v_lshlrev_b32 v5, 4, v2")
        o(f"s_lshr_b32 s50, s{S_WAVE}, 1"); o("s_lshl_b32 s51, s50, 7")
        o("v_add_u32 v6, s51, v5"); o("v_add_u32 v7, s51, v4")
        for wf in range(4):
            qq, pp = wf >> 1, wf & 1
            o(f"ds_read_b128 v[{TA+4*wf}:{TA+4*wf+3}], v6 offset:{CS + (qq*64 + pp*16)*4}")
        for pp in range(2): o(f"ds_read_b32 v{TA+16+pp}, v7 offset:{CS + (128 + pp*16)*4}")
        blocks = list(range(4)) + ([-1] if wm == 0 else [])
        vblocks = list(range(4)) + ([-1] if wm == 1 else [])
        def rbof(r): return 0 if r < 0 else 1 + 4 * wm + r
        for bi, r in enumerate(blocks):
            o(f"ds_read_b32 a{2*bi}, v4 offset:{ST_A + rbof(r)*64}"); o(f"ds_read_b32 a{2*bi+1}, v4 offset:{ST_B + rbof(r)*64}")
        for bi, r in enumerate(vblocks):
            o(f"ds_read_b128 a[{16+8*bi}:{19+8*bi}], v5 offset:{ST_A + rbof(r)*64}"); o(f"ds_read_b128 a[{20+8*bi}:{23+8*bi}], v5 offset:{ST_B + rbof(r)*64}")
        o(f"s_mov_b32 s52, {f2u((32 ** -0.5) * LOG2E)}")
        o("s_waitcnt lgkmcnt(0)")
        for bi, r in enumerate(blocks):
            o(f"v_accvgpr_read_b32 v12, a{2*bi}"); o(f"v_accvgpr_read_b32 v14, a{2*bi+1}")
            if r >= 0:
                o("v_mul_f32 v158, s52, v12"); o("v_mul_f32 v120, s52, v14")
                for (wf0, dstb, a, b) in ((0, acc(0, r), 158, 120), (2, acc(2, r), 12, 14)):
                    for t in range(2):
                        wf = wf0 + t; C = TA + 4 * wf
                        for e in (0, 2): o(f"v_pk_mul_f32 v[{122+4*t+e}:{123+4*t+e}], v[{C+e}:{C+e+1}], v[{b}:{b+1}] op_sel_hi:[1,0]")
                    for t in range(2):
                        wf = wf0 + t; A = acc(wf, r)
                        for e in (0, 2): o(f"v_pk_fma_f32 v[{A+e}:{A+e+1}], v[{A+e}:{A+e+1}], v[{a}:{a+1}], v[{122+4*t+e}:{123+4*t+e}] op_sel_hi:[1,0,1]")
                    A0 = acc(wf0, r); A1 = acc(wf0 + 1, r)
                    o(f"v_cvt_pk_bf16_f32 v{dstb}, v{A0}, v{A0+1}"); o(f"v_cvt_pk_bf16_f32 v{dstb+1}, v{A0+2}, v{A0+3}")
                    o(f"v_cvt_pk_bf16_f32 v{dstb+2}, v{A1}, v{A1+1}"); o(f"v_cvt_pk_bf16_f32 v{dstb+3}, v{A1+2}, v{A1+3}")
            else:
                for t in range(2):
                    C = TA + 4 * (2 + t)
                    for e in (0, 2): o(f"v_pk_mul_f32 v[{122+4*t+e}:{123+4*t+e}], v[{C+e}:{C+e+1}], v[14:15] op_sel_hi:[1,0]")
                for t in range(2):
                    A = HAL + 4 * t
                    for e in (0, 2): o(f"v_pk_fma_f32 v[{A+e}:{A+e+1}], v[{A+e}:{A+e+1}], v[12:13], v[{122+4*t+e}:{123+4*t+e}] op_sel_hi:[1,0,1]")
                o(f"v_cvt_pk_bf16_f32 v{HAL}, v{HAL}, v{HAL+1}"); o(f"v_cvt_pk_bf16_f32 v{HAL+1}, v{HAL+2}, v{HAL+3}")
                o(f"v_cvt_pk_bf16_f32 v{HAL+2}, v{HAL+4}, v{HAL+5}"); o(f"v_cvt_pk_bf16_f32 v{HAL+3}, v{HAL+6}, v{HAL+7}")
        order = [vblocks.index(3)] + ([vblocks.index(-1)] if wm == 1 else []) + [vblocks.index(x) for x in (0, 1, 2)]
        o(f"v_mov_b32 v40, v{TA+16}"); o(f"v_mov_b32 v42, v{TA+17}")
        o(f"s_mul_i32 s51, s50, 3072"); o("v_lshlrev_b32 v6, 4, v1"); o("v_add_u32 v6, s51, v6")
        for oi, bi in enumerate(order):
            r = vblocks[bi]
            for e in range(8): o(f"v_accvgpr_read_b32 v{32+e}, a{16+8*bi+e}")
            for db in range(2):
                for e in (0, 2): o(f"v_pk_mul_f32 v[{64+4*db+e}:{65+4*db+e}], v[{36+e}:{37+e}], v[{40+2*db}:{41+2*db}] op_sel_hi:[1,0]")
            for db in range(2):
                A = acc(4 + db, r) if r >= 0 else HAL + 4 * db
                for e in (0, 2): o(f"v_pk_fma_f32 v[{A+e}:{A+e+1}], v[{A+e}:{A+e+1}], v[{32+e}:{33+e}], v[{64+4*db+e}:{65+4*db+e}]")
            for db in range(2):
                A = acc(4 + db, r) if r >= 0 else HAL + 4 * db
                d = VS[db] + 2 + 2 * r if r >= 0 else 44 + 2 * db
                o(f"v_cvt_pk_bf16_f32 v{d}, v{A}, v{A+1}"); o(f"v_cvt_pk_bf16_f32 v{d+1}, v{A+2}, v{A+3}")
            if wm == 0 and r == 3:
                o(f"ds_write_b128 v6, v[{acc(2,3)}:{acc(2,3)+3}] offset:{EX + 1024}")
                o(f"ds_write_b64 v6, v[{VS[0]+8}:{VS[0]+9}] offset:{EX + 2048}"); o(f"ds_write_b64 v6, v[{VS[1]+8}:{VS[1]+9}] offset:{EX + 2056}")
            if wm == 1 and r == -1:
                o(f"ds_write_b128 v6, v[44:47] offset:{EX}")
        o("s_waitcnt lgkmcnt(0)"); o("s_barrier")
        KPREV = HAL
        if wm == 0:
            o(f"ds_read_b64 v[{VS[0]}:{VS[0]+1}], v6 offset:{EX}"); o(f"ds_read_b64 v[{VS[1]}:{VS[1]+1}], v6 offset:{EX+8}")
        else:
            o(f"ds_read_b128 v[{KPREV}:{KPREV+3}], v6 offset:{EX + 1024}")
            o(f"ds_read_b64 v[{VS[0]}:{VS[0]+1}], v6 offset:{EX+2048}"); o(f"ds_read_b64 v[{VS[1]}:{VS[1]+1}], v6 offset:{EX+2056}")
        MP, MC = 140, 144
        o(f"s_mov_b32 s53, {f2u(-1e30)}")
        o("v_lshlrev_b32 v12, 2, v2"); o("v_sub_u32 v12, v12, v3"); o("v_mov_b32 v15, s53"); o("v_mov_b32 v158, 0")
        for e in range(4):
            o(f"v_add_u32 v13, {e}, v12"); o("v_and_b32 v14, 1, v13")
            o("v_cmp_le_i32 vcc, 2, v13"); o("v_cmp_eq_u32 s[54:55], 0, v14"); o("s_and_b64 vcc, vcc, s[54:55]")
            o(f"v_cndmask_b32 v{MP+e}, v15, v158, vcc")
            o("v_cmp_ge_i32 vcc, 0, v13"); o("s_and_b64 vcc, vcc, s[54:55]")
            o(f"v_cndmask_b32 v{MC+e}, v15, v158, vcc")
        def Kf(r): return KPREV if r < 0 else acc(2, r)
        for r in (1, 2, 3, 0):
            if r == 0: o("s_waitcnt lgkmcnt(0)")
            S = 80 + 8 * r
            o(f"v_mfma_f32_16x16x32_bf16 v[{S+4}:{S+7}], v[{Kf(r)}:{Kf(r)+3}], v[{acc(0,r)}:{acc(0,r)+3}], 0")
            o(f"v_mfma_f32_16x16x32_bf16 v[{S}:{S+3}], v[{Kf(r-1)}:{Kf(r-1)+3}], v[{acc(0,r)}:{acc(0,r)+3}], 0")
        if wm == 0:
            o(f"s_cmp_eq_u32 s{S_I}, 0"); o("s_cselect_b32 s54, s53, 0")
        MX = [32, 33, 34, 35]; TM = [36, 37, 38, 39]; SM = [40, 41, 42, 43]
        RO = (1, 2, 3, 0)
        for r in RO:
            S = 80 + 8 * r
            for e in range(0, 4, 2):
                o(f"v_pk_add_f32 v[{S+e}:{S+e+1}], v[{S+e}:{S+e+1}], v[{MP+e}:{MP+e+1}]"); o(f"v_pk_add_f32 v[{S+4+e}:{S+5+e}], v[{S+4+e}:{S+5+e}], v[{MC+e}:{MC+e+1}]")
            if wm == 0 and r == 0:
                for e in range(4): o(f"v_add_f32 v{S+e}, s54, v{S+e}")
        for r in RO:
            S = 80 + 8 * r
            o(f"v_max3_f32 v{MX[r]}, v{S}, v{S+1}, v{S+2}"); o(f"v_max3_f32 v{TM[r]}, v{S+3}, v{S+4}, v{S+5}")
        for r in RO:
            S = 80 + 8 * r
            o(f"v_max3_f32 v{MX[r]}, v{MX[r]}, v{S+6}, v{S+7}")
        for r in RO: o(f"v_max_f32 v{MX[r]}, v{MX[r]}, v{TM[r]}")
        self.bfly("v_max_f32", [MX[r] for r in RO], [TM[r] for r in RO], bits=(5, 4))
        for r in RO:
            S = 80 + 8 * r
            for e in range(8): o(f"v_sub_f32 v{S+e}, v{S+e}, v{MX[r]}")
        for r in RO:
            S = 80 + 8 * r
            for e in range(8): o(f"v_exp_f32 v{S+e}, v{S+e}")
        for r in RO:
            S = 80 + 8 * r; P = 64 + 4 * r
            for e in range(4): o(f"v_cvt_pk_bf16_f32 v{P+e}, v{S+2*e}, v{S+2*e+1}")
        for r in RO:
            S = 80 + 8 * r
            o(f"v_pk_add_f32 v[{S}:{S+1}], v[{S}:{S+1}], v[{S+2}:{S+3}]"); o(f"v_pk_add_f32 v[{S+4}:{S+5}], v[{S+4}:{S+5}], v[{S+6}:{S+7}]")
        for r in RO:
            S = 80 + 8 * r
            o(f"v_pk_add_f32 v[{S}:{S+1}], v[{S}:{S+1}], v[{S+4}:{S+5}]")
        for r in RO:
            S = 80 + 8 * r
            o(f"v_add_f32 v{SM[r]}, v{S}, v{S+1}")
        for r in RO:
            S = 80 + 8 * r; P = 64 + 4 * r
            for db in range(2):
                o(f"v_mfma_f32_16x16x32_bf16 v[{S+4*db}:{S+4*db+3}], v[{VS[db]+2*r}:{VS[db]+2*r+3}], v[{P}:{P+3}], 0")
        self.bfly("v_add_f32", [SM[r] for r in RO], [TM[r] for r in RO], bits=(5, 4))
        for r in RO: o(f"v_rcp_f32 v{SM[r]}, v{SM[r]}")
        o(f"s_lshl_b32 s51, s{S_I}, 7"); o(f"s_add_u32 s51, s51, {64*wm}")
        o("v_add_u32 v12, s51, v3"); o("v_lshlrev_b32 v12, 11, v12")
        o("v_and_b32 v13, 1, v2"); o("v_lshlrev_b32 v13, 5, v13"); o("v_lshrrev_b32 v14, 1, v2"); o("v_lshlrev_b32 v14, 4, v14")
        o("v_add3_u32 v12, v12, v13, v14")
        o(f"s_lshl_b32 s51, s{S_M}, 7"); o("s_lshl_b32 s52, s50, 6"); o("s_add_u32 s51, s51, s52"); o(f"s_add_u32 s51, s51, {O_OFF}")
        for r in RO:
            S = 80 + 8 * r; P = 64 + 4 * r
            for e in range(0, 8, 2):
                o(f"v_pk_mul_f32 v[{S+e}:{S+e+1}], v[{S+e}:{S+e+1}], v[{SM[r] & ~1}:{(SM[r] & ~1)+1}] op_sel:[0,{SM[r]&1}] op_sel_hi:[1,{SM[r]&1}]")
            o(f"v_cvt_pk_bf16_f32 v{P}, v{S}, v{S+1}"); o(f"v_cvt_pk_bf16_f32 v{P+1}, v{S+2}, v{S+3}")
            o(f"v_cvt_pk_bf16_f32 v{P+2}, v{S+4}, v{S+5}"); o(f"v_cvt_pk_bf16_f32 v{P+3}, v{S+6}, v{S+7}")
            o(f"v_permlane16_swap_b32 v{P}, v{P+2}"); o(f"v_permlane16_swap_b32 v{P+1}, v{P+3}")
            o(f"s_add_u32 s52, s51, {r*16*2048}")
            o(f"buffer_store_dwordx4 v[{P}:{P+3}], v12, {WSR}, s52 offen sc1")
        o("s_waitcnt vmcnt(0)")
        self.stamp('c')
        o("s_barrier")

    def prod_lane_consts(self):
        o = self.o
        o("v_lshrrev_b32 v2, 3, v1"); o("v_and_b32 v3, 7, v1"); o("v_lshrrev_b32 v4, 4, v1")

    def g2_rings(self):
        o = self.o
        W = Ring("b", 6, 8192, 16384, R_M, 64 * 2048)
        X = Ring("a", 6, 106496, 8192, R_WS, 128, "sc1"); X.soff0 = O_OFF
        self.srd(R_M, P_WO, 1024*1024*2)
        o(f"s_and_b32 s52, s{S_JS}, 1"); o("s_lshl_b32 s52, s52, 6"); o(f"s_lshl_b32 s53, s{S_I}, 7"); o("s_add_u32 s52, s52, s53")
        o(f"s_lshl_b32 s53, s{S_P}, 4"); o("s_add_u32 s52, s52, s53")
        for t in range(2): self.voff_k(30 + t, 52, 8 * t, t, ld_shift=11)
        o(f"s_lshr_b32 s53, s{S_JS}, 1"); o(f"s_lshl_b32 s54, s{S_H}, 2"); o("s_add_u32 s53, s53, s54"); o("s_lshl_b32 s53, s53, 8")
        o(f"s_lshr_b32 s54, s{S_P}, 1"); o("s_lshl_b32 s54, s54, 7"); o("s_add_u32 s53, s53, s54")
        o("s_mov_b32 s55, 2048")
        o(f"s_and_b32 s56, s{S_P}, 1"); o("s_lshl_b32 s56, s56, 16"); o("s_add_u32 s53, s53, s56")
        for t in range(4): self.voff_n(32 + t, t, 53, 55)
        o(f"s_lshl_b32 s58, s{S_P}, 11")
        o(f"s_lshl_b32 s59, s{S_P}, 12")
        X.instrs = [(58, t * 1024, 30 + t) for t in range(2)]
        W.instrs = [(59, t * 1024, 32 + t) for t in range(4)]
        self.rot_compute(62, 16); self.ring_init(X, 60, 16, 62); self.ring_init(W, 61, 16, 62)
        return X, W

    def g1_producer(self):
        o = self.o
        q = Q(self)
        p = S_P
        o(f"s_sub_u32 s{p}, s{S_WAVE}, 4")
        o("s_setprio 3")
        o(f"s_add_u32 s50, s{P_WS}, {EPOCH_OFF}"); o(f"s_addc_u32 s51, s{P_WS+1}, 0"); o(f"s_load_dword s{S_TAG}, s[50:51], 0")
        self.srd(R_X, P_X, 2048*1024*2); self.srd(R_W, P_WQKV, 1024*3072*2)
        self.prod_lane_consts()
        X = Ring("x", 3, self.G1_XB, self.G1_XS, R_X, 128)
        W = Ring("w", 3, self.G1_WB, self.G1_WS, R_W, 64 * 6144)
        o(f"s_lshl_b32 s54, s{S_I}, 7"); o("s_sub_u32 s54, s54, 16"); o(f"s_lshl_b32 s55, s{p}, 3"); o("s_add_u32 s55, s55, s54")
        for t in range(4): self.voff_k(10 + t, 55, 32 * t, ('s', p), ld_shift=11, clamp=True)
        o(f"s_and_b32 s56, s{p}, 1"); o("s_lshl_b32 s56, s56, 3"); o("s_add_u32 s56, s56, s54"); o("s_add_u32 s56, s56, 128")
        self.voff_k(14, 56, 0, ('s', p), ld_shift=11)
        o("s_mov_b32 s57, 6144")
        for t in range(6):
            o(f"s_mul_i32 s52, s{p}, 6"); o(f"s_add_u32 s52, s52, {t}")
            o("s_lshr_b32 s53, s52, 3"); o("s_and_b32 s54, s52, 7")
            o("s_lshl_b32 s55, s54, 3"); o("v_add_u32 v6, s55, v2"); o("v_mul_lo_u32 v6, v6, s57")
            o("s_lshl_b32 s55, s53, 11"); o(f"s_lshl_b32 s56, s{S_M}, 7"); o("s_add_u32 s55, s55, s56"); o("v_add_u32 v6, s55, v6")
            o("s_and_b32 s55, s54, 1"); o("s_lshl_b32 s55, s55, 1"); o("v_and_b32 v7, 1, v4"); o("v_or_b32 v7, s55, v7"); o("v_lshlrev_b32 v7, 1, v7")
            o("v_xor_b32 v7, v7, v3"); o("v_lshlrev_b32 v7, 4, v7"); o(f"v_add_u32 v{15+t}, v6, v7")
        o(f"s_lshl_b32 s58, s{p}, 10"); o(f"s_and_b32 s59, s{p}, 1"); o("s_add_u32 s59, s59, 16"); o("s_lshl_b32 s59, s59, 10")
        o(f"s_mul_i32 s63, s{p}, 6144")
        X.instrs = [(58, t * 4096, 10 + t) for t in range(4)] + [(59, 0, 14)]
        W.instrs = [(63, t * 1024, 15 + t) for t in range(6)]
        self.rot_compute(62, 16); self.ring_init(X, 60, 16, 62); self.ring_init(W, 61, 16, 62)
        for st in range(3):
            self.ring_issue(q, X, st); self.ring_issue(q, W, st)
            if st == 0:
                pass
        o(f"s_lshl_b32 s52, s{S_I}, 7"); o(f"s_lshl_b32 s53, s{S_M}, 3"); o("s_add_u32 s52, s52, s53"); o(f"s_lshl_b32 s53, s{p}, 1"); o("s_add_u32 s65, s52, s53")
        o("s_lshl_b32 s52, s65, 11"); o("v_lshlrev_b32 v21, 4, v1")
        for t in range(4):
            o(f"buffer_load_dwordx4 v[{24+4*t}:{27+4*t}], v21, s[{R_X}:{R_X+3}], s52 offen offset:{t*1024}"); q.issue('SJ')
        o(f"s_min_u32 s66, s{p}, 2"); o("s_lshl_b32 s52, s66, 11"); o(f"s_lshl_b32 s53, s{S_M}, 7"); o("s_add_u32 s67, s52, s53")
        o(f"s_lshl_b32 s64, s{S_I}, 6")
        o(f"s_lshl_b32 s52, s{S_M}, 4"); o(f"s_add_u32 s52, s52, s{S_I}"); o("s_mul_i32 s52, s52, 768"); o("s_lshl_b32 s53, s66, 8"); o("s_add_u32 s52, s52, s53"); o(f"s_add_u32 s66, s52, {CS1_OFF}")
        cl, cc, cf = self.colsum_job(q, R_W, 57, 67, 64, 66, 'SJ')
        cl()
        def c_x1():
            o("s_mov_b32 s52, 0x3f803f80")
            for r in range(2):
                src = 24 + 8 * r
                o(f"v_mov_b32 v{40+r}, 0"); o(f"v_mov_b32 v{42+r}, 0")
            for e in range(8):
                for r in range(2):
                    src = 24 + 8 * r
                    o(f"v_dot2c_f32_bf16 v{40+r}, s52, v{src+e}"); o(f"v_dot2c_f32_bf16 v{42+r}, v{src+e}, v{src+e}")
        def c_x2():
            self.bfly("v_add_f32", [40, 41, 42, 43], [44, 45, 46, 47])
        def c_x3():
            o(f"s_mov_b32 s52, {f2u(1/1024.)}"); o(f"s_mov_b32 s53, {f2u(1e-5)}")
            for r in range(2):
                o(f"v_mul_f32 v{40+r}, s52, v{40+r}")
                o(f"v_mul_f32 v{42+r}, s52, v{42+r}")
                o(f"v_fma_f32 v{42+r}, -v{40+r}, v{40+r}, v{42+r}")
                o(f"v_max_f32 v{42+r}, 0, v{42+r}"); o(f"v_add_f32 v{42+r}, s53, v{42+r}"); o(f"v_rsq_f32 v{42+r}, v{42+r}")
                o(f"v_mul_f32 v{40+r}, v{40+r}, v{42+r}"); o(f"v_sub_f32 v{40+r}, 0, v{40+r}")
            o("v_cmp_eq_u32 vcc, 1, v1"); o("v_cndmask_b32 v44, v42, v43, vcc")
            o("v_cmp_eq_u32 vcc, 2, v1"); o("v_cndmask_b32 v44, v44, v40, vcc")
            o("v_cmp_eq_u32 vcc, 3, v1"); o("v_cndmask_b32 v44, v44, v41, vcc")
            o("v_and_b32 v45, 1, v1"); o("v_lshlrev_b32 v45, 2, v45"); o("v_lshrrev_b32 v46, 1, v1"); o("v_lshlrev_b32 v46, 13, v46"); o("v_add_u32 v45, v45, v46")
            o(f"s_lshl_b32 s52, s65, 2"); o(f"s_add_u32 s52, s52, {ST1_OFF}")
            o("s_mov_b64 s[54:55], exec"); o("s_mov_b64 exec, 15")
            o(f"buffer_store_dword v44, v45, {WSR}, s52 offen sc1"); q.issue('SJst')
            o("v_mov_b32 v44, 0"); o("v_lshlrev_b32 v45, 2, v1"); o(f"s_lshl_b32 s52, s65, 3"); o(f"s_add_u32 s52, s52, {ST3_OFF}")
            o(f"buffer_store_dword v44, v45, {WSR}, s52 offen sc1"); q.issue('SJst')
            o("s_mov_b64 exec, s[54:55]")
        def tagfix():
            o("s_waitcnt lgkmcnt(0)")
            o(f"s_mul_i32 s{S_TAG}, s{S_TAG}, 1664525"); o(f"s_add_u32 s{S_TAG}, s{S_TAG}, 1013904223")
        def seq(*fs):
            def f():
                for x in fs: x()
            return f
        def gather():
            self.poll([(F_S1R, S_I, 0xffff), (F_S1R, 64, 0xffff), (F_S1C, S_M, 0xffff)])
        hooks = {
            1: seq(tagfix, lambda: q.wait('SJ'), c_x1),
            2: seq(c_x2, cc(0, 2)),
            3: seq(c_x3, cc(2, 5)),
            4: seq(cc(5, 8), cf),
            6: lambda: q.wait('SJst'),
            7: seq(lambda: self.flag_store(F_S1R, S_I, S_M), lambda: self.flag_store(F_S1C, S_M, S_I),
                   lambda: (o(f"s_max_u32 s64, s{S_I}, 1"), o("s_sub_u32 s64, s64, 1"))),
            10: gather,
        }
        def g_loads():
            o(f"s_lshl_b32 s52, s{S_I}, 9"); o("s_sub_u32 s52, s52, 64")
            o("v_lshlrev_b32 v26, 4, v1"); o("v_add_u32 v26, s52, v26"); o("v_max_i32 v26, 0, v26")
            o(f"s_and_b32 s53, s{p}, 1"); o("s_lshl_b32 s53, s53, 13"); o(f"s_add_u32 s53, s53, {ST1_OFF}")
            o(f"buffer_load_dwordx4 v[28:31], v26, {WSR}, s53 offen sc1"); q.issue('ga')
            o(f"s_min_u32 s54, s{p}, 2"); o("s_lshl_b32 s54, s54, 8")
            o(f"s_lshl_b32 s53, s{S_M}, 4"); o("s_mul_i32 s53, s53, 768"); o("s_add_u32 s53, s53, s54"); o(f"s_add_u32 s53, s53, {CS1_OFF}")
            o("v_mul_u32_u24 v27, 768, v4"); o("v_and_b32 v40, 15, v1"); o("v_lshlrev_b32 v40, 4, v40"); o("v_add_u32 v27, v27, v40")
            for t in range(4):
                o(f"buffer_load_dwordx4 v[{32+4*t}:{35+4*t}], v27, {WSR}, s53 offen sc1"); q.issue('ga')
                if t < 3: o("s_add_u32 s53, s53, 3072")
        def g_fin():
            q.wait('ga')
            o(f"s_and_b32 s53, s{p}, 1"); o("s_mul_i32 s53, s53, 576"); o("v_lshlrev_b32 v26, 4, v1"); o("v_add_u32 v26, s53, v26")
            o("v_cmp_gt_u32 vcc, 36, v1"); o("s_and_saveexec_b64 s[54:55], vcc")
            o(f"ds_write_b128 v26, v[28:31] offset:0")
            o("s_mov_b64 exec, s[54:55]")
            for e in range(4):
                o(f"v_add_f32 v{32+e}, v{32+e}, v{36+e}"); o(f"v_add_f32 v{40+e}, v{40+e}, v{44+e}")
            for e in range(4): o(f"v_add_f32 v{32+e}, v{32+e}, v{40+e}")
            self.bfly("v_add_f32", [32, 33, 34, 35], [36, 37, 38, 39], bits=(5, 4))
            o(f"s_min_u32 s54, s{p}, 2"); o("s_lshl_b32 s54, s54, 8"); o("v_and_b32 v40, 15, v1"); o("v_lshlrev_b32 v40, 4, v40"); o("v_add_u32 v40, s54, v40")
            o(f"ds_write_b128 v40, v[32:35] offset:1152")
            o("s_waitcnt lgkmcnt(0)")
        hooks[11] = g_loads
        hooks[13] = g_fin
        self.prod_loop(q, 16, [X, W], hooks, st_at=((0, 2, 4, 6, 9, 10, 11, 12, 13, 15) if 'k1' in self.opts else ()))
        rings = None
        if self.upto >= 2:
            X2, W2 = self.g2_rings()
            for st in range(W2.ns): self.ring_issue(q, W2, st)
            rings = (X2, W2)
        c3 = self.upto >= 3
        if c3:
            self.srd(R_X, P_WIN, 1024*3584*2)
            o("s_mov_b32 s63, 7168"); o(f"s_lshl_b32 s64, s{S_I}, 6")
            o(f"s_min_u32 s52, s{S_J3}, 13"); o("s_lshl_b32 s52, s52, 8")
            o(f"s_and_b32 s53, s{p}, 1"); o("s_lshl_b32 s53, s53, 7"); o("s_add_u32 s52, s52, s53")
            o(f"s_lshr_b32 s53, s{p}, 1"); o("s_mul_i32 s53, s53, 3584"); o("s_add_u32 s65, s52, s53")
            o(f"s_lshl_b32 s52, s{S_M}, 4"); o(f"s_add_u32 s52, s52, s{S_I}"); o("s_lshl_b32 s52, s52, 10"); o(f"s_lshl_b32 s53, s{p}, 8"); o("s_add_u32 s52, s52, s53"); o(f"s_add_u32 s66, s52, {CS3_OFF}")
            cl, cc, cf = self.colsum_job(q, R_X, 63, 65, 64, 66, 'C3')
            cl()
        o("s_barrier")
        if c3:
            q.wait('C3'); cc(0, 8)(); cf()
        o("s_barrier")
        self.flag_store(F_G1, S_I, S_M)
        self.stamp('p')
        return q, rings

    def g25_consumer(self, which):
        o = self.o
        g5 = which == 5
        NK = 28 if g5 else 16
        XB, XNS = (16384, 4) if g5 else (106496, 6)
        WB, WNS = (49152, 7) if g5 else (8192, 6)
        ACC = 16; VX0, VW0 = 8, 144
        RES = 48
        def acc(rb, cb): return ACC + (rb * 4 + cb) * 4
        def fx(st, f): return ar(st * 24 + f * 4, 4)
        def fw(st, cb, h=None):
            b = st * 24 + 8 + cb * 4
            return ar(b, 4) if h is None else ar(b + 2 * h, 2)
        o(f"s_and_b32 s50, s{S_WAVE}, 1"); o("s_lshl_b32 s50, s50, 12")
        self.addr_k(VX0, XB, 50)
        o(f"s_lshr_b32 s51, s{S_WAVE}, 1"); o("s_lshl_b32 s51, s51, 13")
        self.addr_n([VW0 + i for i in range(4)], [0, 1, 2, 3], WB, 51)
        for r in range(32): o(f"v_mov_b32 v{ACC+r}, 0")
        o(f"s_and_b32 s52, s{S_JS}, 1"); o("s_lshl_b32 s52, s52, 6"); o(f"s_lshl_b32 s53, s{S_I}, 7"); o("s_add_u32 s52, s52, s53")
        o(f"s_and_b32 s53, s{S_WAVE}, 1"); o("s_lshl_b32 s53, s53, 5"); o("s_add_u32 s52, s52, s53")
        o(f"s_lshr_b32 s53, s{S_JS}, 1"); o(f"s_lshl_b32 s54, s{S_H}, 2"); o("s_add_u32 s53, s53, s54")
        o("s_lshl_b32 s54, s53, 7"); o(f"s_lshr_b32 s55, s{S_WAVE}, 1"); o("s_lshl_b32 s55, s55, 6"); o("s_add_u32 s54, s54, s55")
        o("v_add_u32 v13, s52, v3"); o("v_lshlrev_b32 v13, 11, v13"); o("s_lshl_b32 s55, s54, 1"); o("v_add_u32 v13, s55, v13")
        o("v_lshlrev_b32 v14, 3, v2"); o("v_add_u32 v14, v14, v13")
        o("v_and_b32 v15, 1, v2"); o("v_lshlrev_b32 v15, 5, v15"); o("v_lshrrev_b32 v12, 1, v2"); o("v_lshlrev_b32 v12, 4, v12"); o("v_add3_u32 v15, v13, v15, v12")
        if not g5:
            self.srd(R_X, P_X, 2048*1024*2)
            for rb in range(2):
                o(f"s_mov_b32 s56, {rb*16*2048}")
                for cb in range(4):
                    d = RES + (rb * 4 + cb) * 2
                    o(f"buffer_load_dwordx2 v[{d}:{d+1}], v14, s[{R_X}:{R_X+3}], s56 offen offset:{cb*32}")
        else:
            for rb in range(2):
                o(f"s_mov_b32 s56, {H_OFF + rb*16*2048}")
                for cb in range(4):
                    d = RES + (rb * 4 + cb) * 2
                    o(f"buffer_load_dwordx2 v[{d}:{d+1}], v14, {WSR}, s56 offen offset:{cb*32} sc1")
        o("s_mov_b32 s57, s52"); o("s_mov_b32 s58, s53")
        def reads(st, j):
            xs = [f"ds_read_b128 {fx(st, r)}, v{VX0+j} offset:{r*2048}" for r in range(2)]
            W = [[f"ds_read_b64_tr_b16 {fw(st, cb, h)}, v{VW0+cb} offset:{j*4096+h*512}" for h in range(2)] for cb in range(4)]
            return [xs[0]] + W[0] + [xs[1]] + W[1] + W[2] + W[3]
        def mfmas(st):
            return [f"v_mfma_f32_16x16x32_bf16 {vr(acc(rb, cb), 4)}, {fw(st, cb)}, {fx(st, rb)}, {vr(acc(rb, cb), 4)}" for cb in range(4) for rb in range(2)]
        self.stamp('c')
        self.cons_loop(f"g{which}_loop", NK, reads, mfmas,
                       [([VX0, VX0 + 1], XNS, 8192, 65, 66), ([VW0 + i for i in range(4)], WNS, 16384, 67, 62)], span0=6, span1=8)
        self.stamp('c')
        o("s_waitcnt vmcnt(0)")
        for rb in range(2):
            for cb in range(4):
                d = RES + (rb * 4 + cb) * 2; A = acc(rb, cb)
                o(f"v_lshlrev_b32 v64, 16, v{d}"); o(f"v_and_b32 v65, 0xffff0000, v{d}"); o(f"v_lshlrev_b32 v66, 16, v{d+1}"); o(f"v_and_b32 v67, 0xffff0000, v{d+1}")
                o(f"v_pk_add_f32 v[{A}:{A+1}], v[{A}:{A+1}], v[64:65]"); o(f"v_pk_add_f32 v[{A+2}:{A+3}], v[{A+2}:{A+3}], v[66:67]")
        if g5:
            self.srd(R_M, P_OUT, 2048*1024*2)
        for rb in range(2):
            for cp in range(2):
                A = acc(rb, 2 * cp); B = A + 4; P = 68 + (rb * 2 + cp) * 4
                o(f"v_cvt_pk_bf16_f32 v{P}, v{A}, v{A+1}"); o(f"v_cvt_pk_bf16_f32 v{P+1}, v{A+2}, v{A+3}")
                o(f"v_cvt_pk_bf16_f32 v{P+2}, v{B}, v{B+1}"); o(f"v_cvt_pk_bf16_f32 v{P+3}, v{B+2}, v{B+3}")
                o(f"v_permlane16_swap_b32 v{P}, v{P+2}"); o(f"v_permlane16_swap_b32 v{P+1}, v{P+3}")
                if g5:
                    o(f"s_mov_b32 s56, {rb*16*2048}")
                    o(f"buffer_store_dwordx4 v[{P}:{P+3}], v15, s[{R_M}:{R_M+3}], s56 offen offset:{cp*64}")
                else:
                    o(f"s_mov_b32 s56, {H_OFF + rb*16*2048}")
                    o(f"buffer_store_dwordx4 v[{P}:{P+3}], v15, {WSR}, s56 offen offset:{cp*64} sc1")
        if not g5:
            SUM = [84, 85]; TMP = [86, 87]; M2 = [88, 89]
            for rb in range(2):
                A = acc(rb, 0)
                o(f"v_pk_add_f32 v[90:91], v[{A}:{A+1}], v[{A+2}:{A+3}]")
                for e in range(4, 16, 2): o(f"v_pk_add_f32 v[90:91], v[90:91], v[{A+e}:{A+e+1}]")
                o(f"v_add_f32 v{SUM[rb]}, v90, v91")
            self.bfly("v_add_f32", SUM, TMP, bits=(5, 4))
            o(f"s_mov_b32 s56, {f2u(-1/64.)}")
            for rb in range(2):
                A = acc(rb, 0)
                o(f"v_mul_f32 v92, s56, v{SUM[rb]}")
                for e in range(0, 16, 2): o(f"v_pk_add_f32 v[{A+e}:{A+e+1}], v[{A+e}:{A+e+1}], v[92:93] op_sel_hi:[1,0]")
                o(f"v_pk_mul_f32 v[90:91], v[{A}:{A+1}], v[{A}:{A+1}]")
                for e in range(2, 16, 2): o(f"v_pk_fma_f32 v[90:91], v[{A+e}:{A+e+1}], v[{A+e}:{A+e+1}], v[90:91]")
                o(f"v_add_f32 v{M2[rb]}, v90, v91")
            self.bfly("v_add_f32", M2, TMP, bits=(5, 4))
            o("v_add_u32 v12, s57, v3"); o("v_lshlrev_b32 v12, 7, v12")
            o("s_lshl_b32 s56, s58, 1"); o(f"s_lshr_b32 s55, s{S_WAVE}, 1"); o("s_add_u32 s56, s56, s55"); o("s_lshl_b32 s56, s56, 3"); o(f"s_add_u32 s56, s56, {ST2_OFF}")
            o("s_mov_b64 s[54:55], exec"); o("s_mov_b64 exec, 0xffff")
            for rb in range(2):
                o(f"v_mov_b32 v90, v{SUM[rb]}"); o(f"v_mov_b32 v91, v{M2[rb]}")
                o(f"buffer_store_dwordx2 v[90:91], v12, {WSR}, s56 offen offset:{rb*16*128} sc1")
                if rb == 0: o("s_nop 1")
            o("s_mov_b64 exec, s[54:55]")
            o("s_waitcnt vmcnt(0)")
            self.stamp('c')
            o("s_barrier")
        else:
            self.stamp('c')

    def g2_producer(self, q, rings):
        o = self.o
        X, W = rings
        self.poll([(F_G1, S_I, 0xffff)])
        o("s_barrier")
        for st in range(X.ns): self.ring_issue(q, X, st)
        hooks = {}
        if self.upto >= 3:
            hooks[1] = lambda: q.wait('C3st')
            hooks[2] = lambda: self.flag_store(F_S3C, S_M, S_I)
        self.prod_loop(q, 16, [X, W], hooks)
        r3 = None
        if self.upto >= 3:
            lab_idle = self.nl("idle"); lab_j = self.nl("join")
            o(f"s_cmp_eq_u32 s{S_JS}, 7"); o(f"s_cbranch_scc1 {lab_j}")
            X3, W3 = self.g34_setup()
            for st in range(W3.ns): self.ring_issue(q, W3, st)
            self.lab(lab_j)
            r3 = (X3, W3)
        o("s_barrier")
        self.flag_store(F_G2, S_I, S_M)
        self.stamp('p')
        return r3

    ZS = 16384; XR3 = 49152; WR3 = 98304
    A2, B2, CS3, A3B, BSP = 0, 512, 1024, 2048, 3072
    def gelu_pk(self, x, t, c1, c2, one):
        X = f"v[{x}:{x+1}]"; T = f"v[{t}:{t+1}]"
        return [
            f"v_pk_mul_f32 {T}, {X}, {X}",
            f"v_pk_fma_f32 {T}, {T}, v[{c2}:{c2+1}], v[{c1}:{c1+1}] op_sel_hi:[1,0,0]",
            f"v_pk_mul_f32 {T}, {T}, {X}",
            f"v_exp_f32 v{t}, v{t}", f"v_exp_f32 v{t+1}, v{t+1}",
            f"v_pk_add_f32 {T}, {T}, v[{one}:{one+1}] op_sel_hi:[1,0]",
            f"v_rcp_f32 v{t}, v{t}", f"v_rcp_f32 v{t+1}, v{t+1}",
            f"v_pk_mul_f32 {X}, {X}, {T}"]

    def gelu_many(self, xs, ts, c1, c2, one):
        seqs = [self.gelu_pk(x, t, c1, c2, one) for x, t in zip(xs, ts)]
        for step in range(9 if False else len(seqs[0])):
            for sq in seqs: self.o(sq[step])

    def g34_consumer(self):
        o = self.o
        ACC = 16; VX0 = 8; VWN = 144; VWK = 148
        def acc(rb, cb): return ACC + (cb * 4 + rb) * 4
        def fx(st, f): return ar(st * 32 + f * 4, 4)
        def fw(st, cb, h=None):
            b = st * 32 + 16 + cb * 4
            return ar(b, 4) if h is None else ar(b + 2 * h, 2)
        o(f"s_and_b32 s50, s{S_WAVE}, 1"); o("s_lshl_b32 s50, s50, 13")
        self.addr_k(VX0, self.XR3, 50)
        o(f"s_lshr_b32 s51, s{S_WAVE}, 1"); o("s_lshl_b32 s51, s51, 13")
        self.addr_n([VWN + i for i in range(4)], [0, 1, 2, 3], self.WR3, 51)
        self.addr_k(VWK, self.WR3, 51)
        for r in range(64): o(f"v_mov_b32 v{ACC+r}, 0")
        def readsN(st, j):
            xs = [f"ds_read_b128 {fx(st, r)}, v{VX0+j} offset:{r*2048}" for r in range(4)]
            W = [[f"ds_read_b64_tr_b16 {fw(st, cb, h)}, v{VWN+cb} offset:{j*4096+h*512}" for h in range(2)] for cb in range(4)]
            return [xs[0]] + W[0] + [xs[1], xs[2], xs[3]] + W[1] + W[2] + W[3]
        def readsK(st, j):
            xs = [f"ds_read_b128 {fx(st, r)}, v{VX0+j} offset:{r*2048}" for r in range(4)]
            W = [f"ds_read_b128 {fw(st, cb)}, v{VWK+j} offset:{cb*2048}" for cb in range(4)]
            return [xs[0], W[0], xs[1], xs[2], xs[3], W[1], W[2], W[3]]
        def mfN(st):
            return [f"v_mfma_f32_16x16x32_bf16 {vr(acc(rb, cb), 4)}, {fx(st, rb)}, {fw(st, cb)}, {vr(acc(rb, cb), 4)}" for cb in range(4) for rb in range(4)]
        def mfT(st):
            return [f"v_mfma_f32_16x16x32_bf16 {vr(acc(rb, cb), 4)}, {fw(st, cb)}, {fx(st, rb)}, {vr(acc(rb, cb), 4)}" for cb in range(4) for rb in range(4)]
        wregs = [VWN + i for i in range(4)] + [VWK, VWK + 1]
        adv = [([VX0, VX0 + 1], 3, 16384, 65, 66), (wregs, 4, 16384, 67, 62)]
        self.stamp('c')
        self.cons_loop("g3a_loop", 16, readsN, mfN, adv)
        self.stamp('c')
        o("v_lshlrev_b32 v4, 2, v3"); o("v_lshlrev_b32 v5, 4, v2")
        o(f"s_and_b32 s50, s{S_WAVE}, 1"); o(f"s_lshr_b32 s51, s{S_WAVE}, 1")
        o("s_lshl_b32 s52, s50, 8"); o("v_add_u32 v5, s52, v5")
        o("s_lshl_b32 s52, s51, 8"); o("v_add_u32 v6, s52, v4")
        for cb in range(4): o(f"ds_read_b32 v{80+2*cb}, v6 offset:{self.CS3 + (128 + 16*cb)*4}")
        for rb in range(4):
            o(f"ds_read_b128 v[{96+8*rb}:{99+8*rb}], v5 offset:{self.A2 + rb*64}"); o(f"ds_read_b128 v[{100+8*rb}:{103+8*rb}], v5 offset:{self.B2 + rb*64}")
        o("v_lshlrev_b32 v7, 7, v3"); o("s_lshl_b32 s52, s50, 14"); o("s_lshl_b32 s53, s51, 13"); o("s_add_u32 s52, s52, s53"); o(f"s_add_u32 s52, s52, {self.ZS}")
        o("v_add_u32 v7, s52, v7"); o("v_and_b32 v12, 1, v2"); o("v_lshlrev_b32 v12, 3, v12"); o("v_add_u32 v7, v7, v12")
        o("v_lshrrev_b32 v12, 1, v2"); o("v_and_b32 v13, 7, v3")
        for rb in range(4):
            o(f"v_or_b32 v14, {2*rb}, v12"); o("v_xor_b32 v14, v14, v13"); o("v_lshlrev_b32 v14, 4, v14"); o(f"v_add_u32 v{88+rb}, v14, v7")
        o("s_waitcnt lgkmcnt(0)")
        for cb in range(4):
            for rb in range(4):
                A = acc(rb, cb); a = 96 + 8 * rb; b = a + 4
                for e in (0, 2): o(f"v_pk_mul_f32 v[{128+e}:{129+e}], v[{b+e}:{b+e+1}], v[{80+2*cb}:{81+2*cb}] op_sel_hi:[1,0]")
                for e in (0, 2): o(f"v_pk_fma_f32 v[{A+e}:{A+e+1}], v[{A+e}:{A+e+1}], v[{a+e}:{a+e+1}], v[{128+e}:{129+e}]")
                o(f"v_cvt_pk_bf16_f32 v{A}, v{A}, v{A+1}"); o(f"v_cvt_pk_bf16_f32 v{A+1}, v{A+2}, v{A+3}")
                o(f"ds_write_b64 v{88+rb}, v[{A}:{A+1}] offset:{cb*2048}")
        for r in range(64): o(f"v_mov_b32 v{ACC+r}, 0")
        self.stamp('c')
        def nxt():
            return [], readsK(0, 0)
        self.cons_loop("g3b_loop", 16, readsN, mfT, adv, cont=True, next_reads=nxt)
        self.stamp('c')
        o("v_lshlrev_b32 v4, 2, v3"); o("v_lshlrev_b32 v5, 4, v2")
        o(f"s_and_b32 s50, s{S_WAVE}, 1"); o(f"s_lshr_b32 s51, s{S_WAVE}, 1")
        o("s_lshl_b32 s52, s50, 8"); o("v_add_u32 v4, s52, v4")
        o("s_lshl_b32 s52, s51, 8"); o("v_add_u32 v5, s52, v5")
        for cb in range(4): o(f"ds_read_b128 v[{80+4*cb}:{83+4*cb}], v5 offset:{self.CS3 + 16*cb*4}")
        for rb in range(4):
            o(f"ds_read_b32 v{96+4*rb}, v4 offset:{self.A2 + rb*64}"); o(f"ds_read_b32 v{98+4*rb}, v4 offset:{self.B2 + rb*64}")
        o("v_lshlrev_b32 v7, 8, v3"); o("s_lshl_b32 s52, s50, 14"); o(f"s_add_u32 s52, s52, {self.ZS}"); o("v_add_u32 v7, s52, v7")
        o("v_and_b32 v12, 1, v2"); o("v_lshlrev_b32 v12, 3, v12"); o("v_add_u32 v7, v7, v12")
        o("v_lshrrev_b32 v12, 1, v2"); o("s_lshl_b32 s53, s51, 3"); o("v_or_b32 v12, s53, v12")
        for cb in range(4):
            o(f"v_or_b32 v14, {2*cb}, v12"); o("v_xor_b32 v14, v14, v3"); o("v_lshlrev_b32 v14, 4, v14"); o(f"v_add_u32 v{152+cb}, v14, v7")
        o("s_waitcnt lgkmcnt(0)")
        for cb in range(4):
            for rb in range(4):
                A = acc(rb, cb); a = 96 + 4 * rb; b = a + 2; C = 80 + 4 * cb
                for e in (0, 2): o(f"v_pk_mul_f32 v[{128+e}:{129+e}], v[{C+e}:{C+e+1}], v[{b}:{b+1}] op_sel_hi:[1,0]")
                for e in (0, 2): o(f"v_pk_fma_f32 v[{A+e}:{A+e+1}], v[{A+e}:{A+e+1}], v[{a}:{a+1}], v[{128+e}:{129+e}] op_sel_hi:[1,0,1]")
                o(f"v_cvt_pk_bf16_f32 v{A}, v{A}, v{A+1}"); o(f"v_cvt_pk_bf16_f32 v{A+1}, v{A+2}, v{A+3}")
                o(f"ds_write_b64 v{152+cb}, v[{A}:{A+1}] offset:{rb*4096}")
        for r in range(64): o(f"v_mov_b32 v{ACC+r}, 0")
        self.stamp('c')
        self.cons_loop("g4_loop", 32, readsK, mfT, adv, cont=True)
        self.stamp('c')
        o("s_barrier")
        o("v_lshlrev_b32 v4, 2, v3"); o(f"s_and_b32 s50, s{S_WAVE}, 1"); o(f"s_lshr_b32 s51, s{S_WAVE}, 1")
        o("s_lshl_b32 s52, s50, 8"); o("v_add_u32 v4, s52, v4")
        for rb in range(4): o(f"ds_read_b32 v{96+2*rb}, v4 offset:{self.BSP + rb*64}")
        for cb in range(4):
            for rb in range(4):
                Z = 104 if False else 0
                o(f"ds_read_b64 a[{(cb*4+rb)*2}:{(cb*4+rb)*2+1}], v{152+cb} offset:{rb*4096}")
        o(f"s_lshl_b32 s52, s{S_I}, 7"); o("s_lshl_b32 s53, s50, 6"); o("s_add_u32 s52, s52, s53")
        o("v_add_u32 v12, s52, v3"); o("s_mov_b32 s53, 3584"); o("v_mul_lo_u32 v12, v12, s53")
        o("v_and_b32 v13, 1, v2"); o("v_lshlrev_b32 v13, 5, v13"); o("v_lshrrev_b32 v14, 1, v2"); o("v_lshlrev_b32 v14, 4, v14"); o("v_add3_u32 v12, v12, v13, v14")
        o(f"s_lshl_b32 s52, s{S_J3}, 8"); o("s_lshl_b32 s53, s51, 7"); o("s_add_u32 s52, s52, s53"); o(f"s_add_u32 s52, s52, {U_OFF}")
        o("s_waitcnt lgkmcnt(0)")
        for rb in range(4):
            for cp in range(2):
                for t in range(2):
                    cb = 2 * cp + t; A = acc(rb, cb); zi = (cb * 4 + rb) * 2
                    o(f"v_accvgpr_read_b32 v104, a{zi}"); o(f"v_accvgpr_read_b32 v105, a{zi+1}")
                    o("v_lshlrev_b32 v106, 16, v104"); o("v_and_b32 v107, 0xffff0000, v104"); o("v_lshlrev_b32 v108, 16, v105"); o("v_and_b32 v109, 0xffff0000, v105")
                    for e in (0, 2): o(f"v_pk_add_f32 v[{A+e}:{A+e+1}], v[{A+e}:{A+e+1}], v[{96+2*rb}:{97+2*rb}] op_sel_hi:[1,0]")
                    for e in (0, 2): o(f"v_pk_mul_f32 v[{A+e}:{A+e+1}], v[{A+e}:{A+e+1}], v[{106+e}:{107+e}]")
                A = acc(rb, 2 * cp); B = acc(rb, 2 * cp + 1); P = 112 + ((rb * 2 + cp) & 3) * 4
                o(f"v_cvt_pk_bf16_f32 v{P}, v{A}, v{A+1}"); o(f"v_cvt_pk_bf16_f32 v{P+1}, v{A+2}, v{A+3}")
                o(f"v_cvt_pk_bf16_f32 v{P+2}, v{B}, v{B+1}"); o(f"v_cvt_pk_bf16_f32 v{P+3}, v{B+2}, v{B+3}")
                o(f"v_permlane16_swap_b32 v{P}, v{P+2}"); o(f"v_permlane16_swap_b32 v{P+1}, v{P+3}")
                o(f"s_add_u32 s53, s52, {rb*16*3584}")
                o(f"buffer_store_dwordx4 v[{P}:{P+3}], v12, {WSR}, s53 offen offset:{cp*64} sc1")
        o("s_waitcnt vmcnt(0)")
        self.stamp('c')
        o("s_barrier")

    def g34_setup(self):
        o = self.o
        p = S_P
        X = Ring("c", 3, self.XR3, 16384, R_WS, 128, "sc1"); X.soff0 = H_OFF
        W = Ring("d", 4, self.WR3, 16384, R_W, 64 * 7168); W.soff0 = 3584
        self.srd(R_W, P_WIN, 1024*3584*2)
        o(f"s_lshl_b32 s52, s{S_I}, 7"); o(f"s_lshl_b32 s53, s{p}, 5"); o("s_add_u32 s52, s52, s53")
        for t in range(4): self.voff_k(30 + t, 52, 8 * t, t, ld_shift=11)
        for t in range(4): self.voff_k(38 + t, 52, 8 * t, t, ld_shift=12)
        o(f"s_lshl_b32 s53, s{S_J3}, 8"); o(f"s_lshr_b32 s54, s{p}, 1"); o("s_lshl_b32 s54, s54, 7"); o("s_add_u32 s53, s53, s54")
        o(f"s_and_b32 s56, s{p}, 1"); o(f"s_mul_i32 s56, s56, {32*7168}"); o("s_add_u32 s53, s53, s56")
        o("s_mov_b32 s55, 7168")
        for t in range(4): self.voff_n(34 + t, t, 53, 55)
        o(f"s_lshl_b32 s52, s{S_J3}, 7"); o(f"s_lshl_b32 s53, s{p}, 5"); o("s_add_u32 s52, s52, s53")
        for t in range(4): self.voff_k(42 + t, 52, 8 * t, t, ld_shift=7)
        o(f"s_lshl_b32 s58, s{p}, 12")
        X.instrs = [(58, t * 1024, 30 + t) for t in range(4)]
        W.instrs = [(58, t * 1024, 34 + t) for t in range(4)]
        self.rot_compute(62, 16); self.ring_init(X, 60, 16, 62); self.ring_init(W, 61, 16, 62)
        return X, W

    def g34_producer(self, q, X, W):
        o = self.o
        p = S_P
        self.poll([(F_G2, S_I, 0xffff), (F_S3C, S_M, 0xffff)])
        o("s_barrier")
        for st in range(X.ns): self.ring_issue(q, X, st)
        C1 = -2.0 * 0.7978845608028654 * LOG2E
        C2 = C1 * 0.044715
        hooks = {}
        def ln2_loads():
            o(f"s_lshl_b32 s52, s{S_I}, 7"); o(f"s_lshl_b32 s53, s{p}, 5"); o("s_add_u32 s52, s52, s53"); o("s_lshl_b32 s52, s52, 7"); o(f"s_add_u32 s52, s52, {ST2_OFF}")
            o("v_lshlrev_b32 v50, 6, v1")
            for t in range(4):
                o(f"buffer_load_dwordx4 v[{64+4*t}:{67+4*t}], v50, {WSR}, s52 offen offset:{16*t} sc1"); q.issue('g2s')
            o(f"s_lshl_b32 s53, s{S_M}, 14"); o(f"s_lshl_b32 s54, s{p}, 8"); o("s_add_u32 s53, s53, s54"); o(f"s_add_u32 s53, s53, {CS3_OFF}")
            o("v_lshlrev_b32 v51, 10, v4"); o("v_and_b32 v52, 15, v1"); o("v_lshlrev_b32 v52, 4, v52"); o("v_add_u32 v51, v51, v52")
            for t in range(4):
                o(f"buffer_load_dwordx4 v[{80+4*t}:{83+4*t}], v51, {WSR}, s53 offen sc1"); q.issue('g2s')
                if t < 3: o("s_add_u32 s53, s53, 4096")
            self.srd(R_M, P_BSP, 4096)
            o(f"s_lshl_b32 s52, s{S_I}, 7"); o(f"s_lshl_b32 s53, s{p}, 5"); o("s_add_u32 s52, s52, s53"); o("s_lshl_b32 s52, s52, 1")
            o("v_lshlrev_b32 v53, 1, v1")
            o(f"buffer_load_ushort v96, v53, s[{R_M}:{R_M+3}], s52 offen"); q.issue('g2s')
        def ln2_fin():
            q.wait('g2s')
            o("v_add_f32 v97, v64, v66")
            for t in range(2, 8): o(f"v_add_f32 v97, v97, v{64+2*t}")
            o("v_add_f32_dpp v97, v97, v97 quad_perm:[1,0,3,2] row_mask:0xf bank_mask:0xf")
            o(f"s_mov_b32 s52, {f2u(1/1024.)}"); o("v_mul_f32 v97, s52, v97")
            o(f"s_mov_b32 s53, {f2u(1/64.)}"); o(f"s_mov_b32 s54, {f2u(64.)}")
            o("v_mov_b32 v98, 0")
            for t in range(8):
                o(f"v_fma_f32 v99, v{64+2*t}, s53, -v97")
                o("v_mul_f32 v99, v99, v99"); o(f"v_fma_f32 v99, v99, s54, v{65+2*t}"); o("v_add_f32 v98, v98, v99")
            o("v_add_f32_dpp v98, v98, v98 quad_perm:[1,0,3,2] row_mask:0xf bank_mask:0xf")
            o(f"s_mov_b32 s53, {f2u(1e-5)}"); o("v_mov_b32 v99, s53"); o("v_fmac_f32 v99, s52, v98"); o("v_rsq_f32 v98, v99")
            o("v_mul_f32 v97, v97, v98"); o("v_sub_f32 v97, 0, v97")
            o("v_and_b32 v99, 1, v1"); o("v_cmp_eq_u32 vcc, 1, v99"); o("v_cndmask_b32 v98, v98, v97, vcc")
            o("v_lshrrev_b32 v100, 1, v1"); o("v_lshlrev_b32 v100, 2, v100"); o("v_lshlrev_b32 v99, 9, v99"); o("v_add_u32 v100, v100, v99")
            o(f"s_lshl_b32 s52, s{p}, 7"); o("v_add_u32 v100, s52, v100")
            o(f"ds_write_b32 v100, v98 offset:{self.A2}")
            for e in range(4):
                o(f"v_add_f32 v{80+e}, v{80+e}, v{84+e}"); o(f"v_add_f32 v{88+e}, v{88+e}, v{92+e}")
            for e in range(4): o(f"v_add_f32 v{80+e}, v{80+e}, v{88+e}")
            self.bfly("v_add_f32", [80, 81, 82, 83], [84, 85, 86, 87], bits=(5, 4))
            o(f"s_lshl_b32 s54, s{p}, 8"); o("v_and_b32 v52, 15, v1"); o("v_lshlrev_b32 v52, 4, v52"); o("v_add_u32 v52, s54, v52")
            o(f"ds_write_b128 v52, v[80:83] offset:{self.CS3}")
            o("v_lshlrev_b32 v96, 16, v96"); o("v_lshlrev_b32 v53, 2, v1"); o(f"s_lshl_b32 s54, s{p}, 7"); o("v_add_u32 v53, s54, v53")
            o("s_mov_b64 s[54:55], exec"); o("s_mov_b64 exec, 0xffffffff")
            o(f"ds_write_b32 v53, v96 offset:{self.BSP}")
            o("s_mov_b64 exec, s[54:55]")
            o("s_waitcnt lgkmcnt(0)")
        hooks[0] = ln2_loads
        hooks[3] = ln2_fin
        CC1, CC2, ONE = 46, 48, 50
        Y = 96
        D = 64
        SUM, SQ = 0, 8
        SUM, SQ = 52, 22
        def z2_read():
            o(f"s_mov_b32 s52, {f2u(C1)}"); o(f"v_mov_b32 v{CC1}, s52"); o(f"s_mov_b32 s52, {f2u(C2)}"); o(f"v_mov_b32 v{CC2}, s52"); o(f"v_mov_b32 v{ONE}, 1.0")
            o(f"s_lshr_b32 s52, s{p}, 1"); o("s_lshl_b32 s52, s52, 14"); o(f"s_and_b32 s53, s{p}, 1"); o("s_lshl_b32 s53, s53, 13"); o("s_add_u32 s52, s52, s53"); o(f"s_add_u32 s52, s52, {self.ZS}")
            o("v_xor_b32 v60, v3, v2"); o("v_lshlrev_b32 v60, 4, v60"); o("v_lshlrev_b32 v61, 7, v2"); o("v_add_u32 v60, v60, v61"); o("v_add_u32 v60, s52, v60")
            for it in range(8): o(f"ds_read_b128 v[{D+4*it}:{D+4*it+3}], v60 offset:{it*1024}")
            for e in range(8): o(f"v_mov_b32 v{SUM+e}, 0"); o(f"v_mov_b32 v{SQ+e}, 0")
            o("s_waitcnt lgkmcnt(0)")
        def z2_chunk(its):
            def f():
                for it in its:
                    y = Y + 8 * it
                    for e in range(4):
                        o(f"v_lshlrev_b32 v{y+2*e}, 16, v{D+4*it+e}"); o(f"v_and_b32 v{y+2*e+1}, 0xffff0000, v{D+4*it+e}")
                    self.gelu_many([y, y + 2, y + 4, y + 6], [12, 14, 16, 18], CC1, CC2, ONE)
                    for e in range(0, 8, 2):
                        o(f"v_pk_add_f32 v[{SUM+e}:{SUM+e+1}], v[{SUM+e}:{SUM+e+1}], v[{y+e}:{y+e+1}]")
                        o(f"v_pk_fma_f32 v[{SQ+e}:{SQ+e+1}], v[{y+e}:{y+e+1}], v[{y+e}:{y+e+1}], v[{SQ+e}:{SQ+e+1}]")
            return f
        def z2_pub():
            for e in range(8): o(f"v_permlane32_swap_b32 v{SUM+e}, v{SQ+e}")
            for e in range(8): o(f"v_add_f32 v{64+e}, v{SUM+e}, v{SQ+e}")
            for j in range(4): o(f"v_permlane16_swap_b32 v{64+2*j}, v{65+2*j}")
            for j in range(4): o(f"v_add_f32 v{72+j}, v{64+2*j}, v{65+2*j}")
            for j in range(4): o(f"v_add_f32_dpp v{72+j}, v{72+j}, v{72+j} row_ror:8 row_mask:0xf bank_mask:0xf")
            o("v_and_b32 v76, 8, v1"); o("v_cmp_ne_u32 vcc, 0, v76")
            o("v_cndmask_b32 v77, v72, v73, vcc"); o("v_cndmask_b32 v78, v74, v75, vcc")
            o("v_lshlrev_b32 v79, 3, v3"); o("v_lshrrev_b32 v76, 2, v76"); o("v_add_u32 v79, v79, v76"); o("v_and_b32 v76, 1, v4"); o("v_add_u32 v79, v79, v76")
            o("v_lshlrev_b32 v79, 3, v79"); o("v_lshrrev_b32 v76, 1, v4"); o("v_lshlrev_b32 v76, 2, v76"); o("v_add_u32 v79, v79, v76")
            o(f"s_lshl_b32 s52, s{S_I}, 1"); o(f"s_lshr_b32 s53, s{p}, 1"); o("s_add_u32 s52, s52, s53"); o("s_lshl_b32 s52, s52, 9"); o(f"s_add_u32 s52, s52, {ST3_OFF}")
            o(f"buffer_atomic_add_f32 v77, v79, {WSR}, s52 offen"); q.issue('z2at')
            o(f"buffer_atomic_add_f32 v78, v79, {WSR}, s52 offen offset:32"); q.issue('z2at')
        def z2_gather():
            o(f"s_lshl_b32 s52, s{S_I}, 1"); o(f"s_lshr_b32 s53, s{p}, 1"); o("s_add_u32 s52, s52, s53"); o("s_lshl_b32 s52, s52, 9"); o(f"s_add_u32 s52, s52, {ST3_OFF}")
            o("v_lshlrev_b32 v61, 6, v3")
            for t in range(4):
                o(f"buffer_load_dwordx4 v[{64+4*t}:{67+4*t}], v61, {WSR}, s52 offen offset:{16*t} sc1"); q.issue('z2g')
        def z2_norm():
            q.wait('z2g')
            o(f"s_mov_b32 s52, {f2u(1/1792.)}"); o(f"s_mov_b32 s53, {f2u(1e-5)}")
            for e in range(8):
                o(f"v_mul_f32 v{64+2*e}, s52, v{64+2*e}"); o(f"v_mul_f32 v{65+2*e}, s52, v{65+2*e}")
                o(f"v_fma_f32 v{65+2*e}, -v{64+2*e}, v{64+2*e}, v{65+2*e}"); o(f"v_max_f32 v{65+2*e}, 0, v{65+2*e}"); o(f"v_add_f32 v{65+2*e}, s53, v{65+2*e}")
            for e in range(8): o(f"v_rsq_f32 v{80+e}, v{65+2*e}")
            for e in range(8): o(f"v_mul_f32 v{88+e}, v{64+2*e}, v{80+e}"); o(f"v_sub_f32 v{88+e}, 0, v{88+e}")
            o(f"s_lshl_b32 s52, s{S_I}, 1"); o(f"s_lshr_b32 s53, s{p}, 1"); o("s_add_u32 s52, s52, s53"); o(f"s_mul_i32 s52, s52, {1792*128}")
            o(f"s_lshl_b32 s53, s{S_J3}, 14"); o("s_add_u32 s52, s52, s53"); o(f"s_and_b32 s53, s{p}, 1"); o("s_lshl_b32 s53, s53, 13"); o("s_add_u32 s52, s52, s53"); o(f"s_add_u32 s52, s52, {Z2T_OFF}")
            o("v_lshlrev_b32 v61, 4, v1")
            for it in range(8):
                y = Y + 8 * it; P = 64 + (it & 3) * 4
                for e in range(0, 8, 2): o(f"v_pk_fma_f32 v[{y+e}:{y+e+1}], v[{y+e}:{y+e+1}], v[{80+e}:{81+e}], v[{88+e}:{89+e}]")
                for e in range(4): o(f"v_cvt_pk_bf16_f32 v{P+e}, v{y+2*e}, v{y+2*e+1}")
                o(f"buffer_store_dwordx4 v[{P}:{P+3}], v61, {WSR}, s52 offen offset:{(it&3)*1024} sc1"); q.issue('z2st')
                if it == 3: o("s_add_u32 s52, s52, 4096")
        def seq(*fs):
            def f():
                for x in fs: x()
            return f
        hooks[16] = seq(z2_read, z2_chunk([0, 1]))
        hooks[17] = z2_chunk([2, 3]); hooks[18] = z2_chunk([4, 5]); hooks[19] = seq(z2_chunk([6, 7]), z2_pub)
        hooks[21] = lambda: q.wait('z2at')
        hooks[22] = lambda: self.flag_store(F_Z2S, S_I, S_M)
        hooks[23] = lambda: self.poll([(F_Z2S, S_I, 0x7f7f)])
        hooks[24] = z2_gather
        hooks[25] = z2_norm
        hooks[26] = lambda: q.wait('z2st')
        hooks[27] = seq(lambda: self.flag_store(F_G3, S_M, S_I), lambda: self.poll([(F_G3, S_M, 0xffff)]))
        def z1_chunk(it):
            def f():
                if it == 0:
                    o(f"s_lshl_b32 s52, s{p}, 13"); o(f"s_add_u32 s52, s52, {self.ZS}"); o("v_lshlrev_b32 v60, 4, v1"); o("v_add_u32 v60, s52, v60")
                o(f"ds_read_b128 v[64:67], v60 offset:{it*1024}"); o("s_waitcnt lgkmcnt(0)")
                y = 96
                for e in range(4):
                    o(f"v_lshlrev_b32 v{y+2*e}, 16, v{64+e}"); o(f"v_and_b32 v{y+2*e+1}, 0xffff0000, v{64+e}")
                self.gelu_many([y, y + 2, y + 4, y + 6], [12, 14, 16, 18], CC1, CC2, ONE)
                for e in range(4): o(f"v_cvt_pk_bf16_f32 v{64+e}, v{y+2*e}, v{y+2*e+1}")
                o(f"ds_write_b128 v60, v[64:67] offset:{it*1024}")
                if it == 7: o("s_waitcnt lgkmcnt(0)")
            return f
        for it in range(8): hooks[34 + 2 * it] = z1_chunk(it)

        NT = 64
        SPR = Ring("e", 3, self.XR3, 16384, R_X, 128)
        ZR = Ring("f", 4, self.WR3, 16384, R_WS, 1792 * 128, "sc1"); ZR.soff0 = Z2T_OFF
        SPR.instrs = [(58, t * 1024, 38 + t) for t in range(4)]
        ZR.instrs = [(58, t * 1024, 42 + t) for t in range(4)]
        def xring(st): return X if st < 32 else SPR
        def wring(st): return W if st < 32 else ZR
        def tagx(st): return f"{xring(st).name}{st}"
        def tagw(st): return f"{wring(st).name}{st}"
        def issue_x(st):
            if st == 32:
                self.srd(R_X, P_WSP, 2048*2048*2); self.rot_compute(62, 32); self.ring_init(SPR, 60, 32, 62)
            self.ring_issue(q, xring(st), st)
        def issue_w(st):
            if st == 16:
                o(f"s_sub_u32 s61, s61, 3584"); W.soff0 = 0
            if st == 32:
                self.rot_compute(62, 32); self.ring_init(ZR, 61, 32, 62)
            self.ring_issue(q, wring(st), st)
        q.wait(tagx(0)); q.wait(tagw(0))
        o("s_barrier")
        for kq in range(NT):
            if kq + 1 < NT:
                q.wait(tagx(kq + 1)); q.wait(tagw(kq + 1))
            o("s_barrier")
            if kq in (15, 27, 31, 63): self.stamp('p')
            if kq + 3 < NT: issue_x(kq + 3)
            if kq + 4 < NT and kq + 4 != 32 and not (28 <= kq < 28):
                pass
            if kq in hooks and kq == 27: hooks[kq]()
            if kq + 4 < NT: issue_w(kq + 4)
            if kq in hooks and kq != 27: hooks[kq]()
        return

    def g5_rings(self):
        o = self.o
        p = S_P
        W = Ring("h", 7, 49152, 16384, R_M, 64 * 2048)
        X = Ring("g", 4, 16384, 8192, R_WS, 128, "sc1"); X.soff0 = U_OFF
        self.srd(R_M, P_WOUT, 1792*1024*2)
        o(f"s_and_b32 s52, s{S_JS}, 1"); o("s_lshl_b32 s52, s52, 6"); o(f"s_lshl_b32 s53, s{S_I}, 7"); o("s_add_u32 s52, s52, s53")
        o(f"s_lshl_b32 s53, s{p}, 4"); o("s_add_u32 s52, s52, s53")
        o("s_mov_b32 s55, 3584")
        for t in range(2): self.voff_k(30 + t, 52, 8 * t, t, ld_s=55)
        o(f"s_lshr_b32 s53, s{S_JS}, 1"); o(f"s_lshl_b32 s54, s{S_H}, 2"); o("s_add_u32 s53, s53, s54"); o("s_lshl_b32 s53, s53, 8")
        o(f"s_lshr_b32 s54, s{p}, 1"); o("s_lshl_b32 s54, s54, 7"); o("s_add_u32 s53, s53, s54")
        o("s_mov_b32 s55, 2048")
        o(f"s_and_b32 s56, s{p}, 1"); o("s_lshl_b32 s56, s56, 16"); o("s_add_u32 s53, s53, s56")
        for t in range(4): self.voff_n(32 + t, t, 53, 55)
        o(f"s_lshl_b32 s58, s{p}, 11"); o(f"s_lshl_b32 s59, s{p}, 12")
        X.instrs = [(58, t * 1024, 30 + t) for t in range(2)]
        W.instrs = [(59, t * 1024, 32 + t) for t in range(4)]
        self.rot_compute(62, 28); self.ring_init(X, 60, 28, 62); self.ring_init(W, 61, 28, 62)
        return X, W

    def finish(self):
        o = self.o
        self.lab("mega_fin")
        if self.stamps:
            o("s_waitcnt lgkmcnt(0)")
            o(f"s_and_b32 s50, s{S_WAVE}, 3"); o("s_cmp_lg_u32 s50, 0"); o("s_cbranch_scc1 mega_fin2")
            o(f"s_lshr_b32 s50, s{S_WAVE}, 2"); o("s_lshl_b32 s50, s50, 7"); o("s_lshl_b32 s51, s2, 8"); o("s_add_u32 s50, s50, s51"); o(f"s_add_u32 s50, s50, {STAMP_OFF}")
            o("v_mov_b32 v4, 0")
            o("s_mov_b64 exec, 1")
            regs = [68, 69] + list(range(STAMP0, STAMP0 + 30))
            for i in range(0, 32, 4):
                for e in range(4): o(f"v_mov_b32 v{8+e}, s{regs[i+e]}")
                o(f"buffer_store_dwordx4 v[8:11], v4, {WSR}, s50 offen offset:{i*4}")
            self.lab("mega_fin2")
        o(f"s_cmp_lg_u32 s{S_WAVE}, 4"); o("s_cbranch_scc1 mega_done")
        o("s_cmp_lg_u32 s2, 0"); o("s_cbranch_scc1 mega_done")
        o("s_mov_b64 exec, 1")
        o(f"v_mov_b32 v8, s{S_TAG}"); o("v_mov_b32 v4, 0"); o(f"s_mov_b32 s50, {EPOCH_OFF}")
        o(f"buffer_store_dword v8, v4, {WSR}, s50 offen sc1")
        self.lab("mega_done")
        o("s_endpgm")

    def build(self):
        o = self.o
        self.prologue()
        o("v_lshrrev_b32 v2, 4, v1"); o("v_and_b32 v3, 15, v1")
        o(f"s_and_b32 s50, s{S_WAVE}, 1"); o("s_cmp_eq_u32 s50, 1"); o("s_cbranch_scc1 g1_c1")
        self.nstamp['c'] = 0
        self.g1_consumer(0)
        o("s_branch g1_cend")
        self.lab("g1_c1")
        self.nstamp['c'] = 0
        self.g1_consumer(1)
        self.lab("g1_cend")
        if self.upto >= 2:
            o("s_barrier")
            self.g25_consumer(2)
        if self.upto >= 3:
            o(f"s_cmp_eq_u32 s{S_JS}, 7"); o("s_cbranch_scc1 c_g5")
            o("s_barrier")
            self.g34_consumer()
            self.lab("c_g5")
            if self.upto >= 5:
                o("s_barrier")
                self.g25_consumer(5)
        o("s_branch mega_fin")
        self.lab("mega_prod")
        q, rings = self.g1_producer()
        if self.upto >= 2: r3 = self.g2_producer(q, rings)
        if self.upto >= 3:
            o(f"s_cmp_eq_u32 s{S_JS}, 7"); o("s_cbranch_scc1 p_idle")
            q2 = Q(self); q2.q = list(q.q)
            self.g34_producer(q2, r3[0], r3[1])
            if self.upto >= 5:
                X5, W5 = self.g5_rings()
                for st in range(W5.ns): self.ring_issue(q2, W5, st)
            o("s_barrier")
            o("s_barrier")
            self.flag_store(F_G4, S_I, S_M)
            self.stamp('p')
            if self.upto >= 5:
                o("s_branch p_g5")
                self.lab("p_idle")
                o("s_waitcnt vmcnt(0)")
                q3 = Q(self)
                X5, W5 = self.g5_rings()
                for st in range(W5.ns): self.ring_issue(q3, W5, st)
                self.lab("p_g5")
                self.poll([(F_G4, S_I, 0x7f7f)])
                o("s_barrier")
                for st in range(X5.ns): self.ring_issue(q3, X5, st)
                self.prod_loop(q3, 28, [X5, W5])
                self.stamp('p')
            else:
                o("s_branch mega_fin")
                self.lab("p_idle")
        o("s_branch mega_fin")
        self.finish()
        lines, n = fix(self.k.lines)
        self.k.lines = lines
        return self.k

if __name__ == "__main__":
    out = sys.argv[1] if len(sys.argv) > 1 else "mega.s"
    upto = 5
    for a in sys.argv[2:]:
        if a.startswith("upto="): upto = int(a[5:])
    g = Gen(stamps=("stamps" in sys.argv), upto=upto, opts=sys.argv[2:])
    k = g.build()
    open(out, "w").write(build_file([(k, (256, 1, 1), (512, 1, 1), 163840)]))
```

```python
import sys, struct
from asmlib import *
from hazard import fix
from layout import *

LOG2E = 1.4426950408889634
def f2u(x): return struct.unpack('<I', struct.pack('<f', x))[0]

P_X, P_WQKV, P_WO, P_BX, P_WIN, P_WSP, P_BSP, P_WOUT, P_OUT, P_DBG, P_WS = 4, 6, 8, 10, 12, 14, 16, 18, 20, 22, 24
S_I, S_M, S_H, S_JS, S_WAVE, S_TAG = 26, 27, 28, 29, 30, 31
R_WS, R_X, R_W, R_M = 32, 36, 40, 44
S_P = 48
S_J3 = 49
STAMP0 = 72
SPIN_MAX = 200000
WSR = f"s[{R_WS}:{R_WS+3}]"

class Q:
    def __init__(self, g): self.g = g; self.q = []; self.un = {}
    def issue(self, tag): self.q.append(tag)
    def untracked(self, tag): self.un[tag] = len(self.q)
    def wait(self, tag):
        idx = max([i for i, t in enumerate(self.q) if t == tag], default=None)
        if idx is None: return
        n = len(self.q) - 1 - idx
        assert n <= 63, n
        self.g.o(f"s_waitcnt vmcnt({n})")
        self.pop(idx + 1)
    def pop(self, cnt):
        self.q = self.q[cnt:]
        self.un = {t: max(0, p - cnt) for t, p in self.un.items()}
    def wait_un(self, tag):
        p = self.un.pop(tag)
        n = len(self.q) - p
        self.g.o(f"s_waitcnt vmcnt({n})")
    def drain(self):
        self.g.o("s_waitcnt vmcnt(0)"); self.q = []; self.un = {}


class Ring:
    def __init__(self, name, ns, base, slot, srd, sstep, sc=""):
        self.name = name; self.ns = ns; self.base = base; self.slot = slot; self.srd = srd; self.sstep = sstep; self.sc = sc
        self.instrs = []
        self.soff0 = 0
        self.sk = None
        self.nk = 16


class Gen:
    def __init__(self, stamps=False, upto=5, opts=()):
        self.opts = set(opts)
        self.k = Kern("mega_kernel")
        self.k.nvgpr = 256; self.k.accum = 160; self.k.nsgpr = 102
        self.stamps = stamps; self.upto = upto
        self.nstamp = {'c': 0, 'p': 0}
    def o(self, s): self.k.o(s)
    def lab(self, s): self.k.lab(s)
    def nl(self, b="L"): return self.k.newlab(b)

    def stamp(self, who):
        if not self.stamps: return
        n = self.nstamp[who]; self.nstamp[who] += 1
        assert n < 13, "too many stamps"
        self.o(f"{'s_memtime' if 'cyc' in self.opts else 's_memrealtime'} s[{STAMP0+2*n}:{STAMP0+2*n+1}]")

    def srd(self, r, ptr, nbytes):
        o = self.o
        o(f"s_mov_b32 s{r}, s{ptr}"); o(f"s_and_b32 s{r+1}, s{ptr+1}, 0xffff")
        o(f"s_mov_b32 s{r+2}, {nbytes}"); o(f"s_mov_b32 s{r+3}, 0x20000")

    def interleave(self, mf, others, span=None):
        n = len(mf); m = len(others); span = min(span or n, n)
        oi = 0
        for i, s in enumerate(mf):
            self.o(s)
            tgt = min(m, -(-((i + 1) * m) // span))
            while oi < tgt:
                self.o(others[oi]); oi += 1
        while oi < m:
            self.o(others[oi]); oi += 1

    def bfly(self, op, xs, ts, bits=(5, 4, 3, 2, 1, 0)):
        o = self.o
        for b in bits:
            if b >= 4:
                pm = "v_permlane32_swap_b32" if b == 5 else "v_permlane16_swap_b32"
                for x, t in zip(xs, ts): o(f"v_mov_b32 v{t}, v{x}")
                for x, t in zip(xs, ts): o(f"{pm} v{x}, v{t}")
                for x, t in zip(xs, ts): o(f"{op} v{x}, v{x}, v{t}")
            else:
                for x in xs: o(f"{op}_dpp v{x}, v{x}, v{x} row_ror:{1 << b} row_mask:0xf bank_mask:0xf")

    def prologue(self):
        o = self.o
        o("s_cmp_ge_u32 s2, 256"); o("s_cbranch_scc1 mega_done")
        o("s_load_dwordx16 s[4:19], s[0:1], 0")
        o("s_load_dwordx4 s[20:23], s[0:1], 64")
        o("s_load_dwordx2 s[24:25], s[0:1], 80")
        if self.stamps: o(f"{'s_memtime' if 'cyc' in self.opts else 's_memrealtime'} s[68:69]")
        o("s_and_b32 s50, s2, 7"); o("s_lshr_b32 s51, s2, 3")
        o("s_and_b32 s52, s50, 3"); o("s_lshl_b32 s52, s52, 2"); o("s_and_b32 s53, s51, 3"); o(f"s_add_u32 s{S_I}, s52, s53")
        o(f"s_lshr_b32 s{S_JS}, s51, 2"); o(f"s_lshr_b32 s{S_H}, s50, 2")
        o(f"s_lshl_b32 s52, s{S_H}, 3"); o(f"s_add_u32 s{S_M}, s52, s{S_JS}")
        o(f"s_mul_i32 s52, s{S_H}, 7"); o(f"s_add_u32 s{S_J3}, s52, s{S_JS}")
        o("v_lshrrev_b32 v1, 6, v0"); o(f"v_readfirstlane_b32 s{S_WAVE}, v1")
        o("v_and_b32 v1, 63, v0")
        o("s_waitcnt lgkmcnt(0)")
        self.srd(R_WS, P_WS, WS_USED)
        o(f"s_cmp_ge_u32 s{S_WAVE}, 4"); o("s_cbranch_scc1 mega_prod")

    def spread(self, mf, others, start=0, per=1):
        o = self.o
        n = len(mf); m = len(others)
        gaps = n - start
        need = -(-m // gaps) if gaps > 0 else m
        per = max(per, need)
        oi = 0
        for i, s in enumerate(mf):
            o(s)
            if i >= start:
                for _ in range(per):
                    if oi < m:
                        o(others[oi]); oi += 1
        while oi < m:
            o(others[oi]); oi += 1

    def cons_loop(self, name, NK, reads, mfmas, adv_regs, span0=None, span1=None, cont=False, next_reads=None, first_zero=False):
        o = self.o
        if not cont:
            for (regs, ns, sb, sidx, sdel) in adv_regs: o(f"s_mov_b32 s{sidx}, 0")
            o("s_barrier")
            for s in reads(0, 0): o(s)
            o("s_waitcnt lgkmcnt(0)")
        o("s_mov_b32 s64, 0")
        if first_zero:
            mz = lambda st: mfmas(st, True) if st == 0 else mfmas(st)
            self._loop_body(name + "_first", 1, reads, mz, adv_regs, reads(0, 0), False)
        if next_reads is not None:
            self._loop_body(name, NK - 1, reads, mfmas, adv_regs, reads(0, 0), True)
            self._loop_body(name + "_last", 1, reads, mfmas, adv_regs, next_reads, False)
        else:
            self._loop_body(name, NK, reads, mfmas, adv_regs, reads(0, 0), True)

    def sched(self, mf, lds, alu_early, alu_late):
        o = self.o
        n = len(mf)
        nl = len(lds)
        per_gap = [[] for _ in range(n)]
        if nl <= n:
            late_gaps = -(-len(alu_late) // 2) if alu_late else 0
            span = min(n, max(nl, n - max(late_gaps, 2)))
            span = max(nl, min(span, nl + (n - nl) // 3))
            for i, r in enumerate(lds): per_gap[(i * span) // nl].append(r)
            last_lds_gap = ((nl - 1) * span) // nl if nl else -1
        else:
            for i, r in enumerate(lds): per_gap[(i * n) // nl].append(r)
            last_lds_gap = n - 1
        for i, a in enumerate(alu_early): per_gap[min(n - 1, i if len(alu_early) <= n else (i * n) // len(alu_early))].append(a)
        g0 = min(n - 1, last_lds_gap) if last_lds_gap >= 0 else 0
        avail = n - g0
        for i, a in enumerate(alu_late):
            per_gap[min(n - 1, g0 + (i * avail) // max(1, len(alu_late)) if len(alu_late) > 2 * avail else g0 + min(avail - 1, (i + 1) // 2))].append(a)
        for i, m in enumerate(mf):
            o(m)
            for x in per_gap[i]: o(x)

    def _loop_body(self, name, NK, reads, mfmas, adv_regs, rd_next, loop):
        o = self.o
        self.lab(name)
        sal = []; upd = []
        for (regs, ns, sb, sidx, sdel) in adv_regs:
            sal += [f"s_add_u32 s{sidx}, s{sidx}, 1", f"s_cmp_eq_u32 s{sidx}, {ns}", f"s_mov_b32 s{sdel}, {sb}",
                    f"s_cselect_b32 s{sdel}, {(-(ns-1)*sb) & 0xffffffff}, s{sdel}", f"s_cselect_b32 s{sidx}, 0, s{sidx}"]
            upd += [f"v_add_u32 v{r}, s{sdel}, v{r}" for r in regs]
        sal += ["s_add_u32 s64, s64, 1"]
        self.sched(mfmas(0), reads(1, 1), sal, upd)
        o("s_waitcnt lgkmcnt(0)")
        o("s_barrier")
        if callable(rd_next):
            pre, rd = rd_next()
            self.sched(mfmas(1), rd, pre, [])
        else:
            self.sched(mfmas(1), rd_next, [], [])
        if loop: o(f"s_cmp_lt_u32 s64, {NK}")
        o("s_waitcnt lgkmcnt(0)")
        if loop: o(f"s_cbranch_scc1 {name}")

    def addr_k(self, dst, const, sreg=None):
        o = self.o
        o("v_lshrrev_b32 v4, 1, v3"); o("v_xor_b32 v4, v2, v4"); o("v_lshlrev_b32 v4, 4, v4")
        o("v_lshlrev_b32 v5, 7, v3"); o(f"v_add_u32 v{dst}, v4, v5")
        if const: o(f"v_add_u32 v{dst}, {const}, v{dst}")
        if sreg is not None: o(f"v_add_u32 v{dst}, s{sreg}, v{dst}")
        o(f"v_xor_b32 v{dst+1}, 64, v{dst}")
    def addr_n(self, dsts, ps, const, sreg=None):
        o = self.o
        o("v_lshrrev_b32 v4, 2, v3"); o("v_and_b32 v5, 3, v3")
        o("v_lshrrev_b32 v6, 1, v4"); o("v_and_b32 v7, 1, v2"); o("v_lshlrev_b32 v7, 1, v7"); o("v_or_b32 v6, v6, v7")
        o("v_lshlrev_b32 v7, 3, v2"); o("v_add_u32 v7, v7, v4"); o("v_lshlrev_b32 v7, 7, v7"); o("v_lshlrev_b32 v12, 3, v5"); o("v_add_u32 v7, v7, v12")
        o(f"v_add_u32 v7, {const}, v7")
        if sreg is not None: o(f"v_add_u32 v7, s{sreg}, v7")
        for d, p in zip(dsts, ps):
            src = f"s{p[1]}" if isinstance(p, tuple) else str(p)
            o(f"v_xor_b32 v12, {src}, v6"); o("v_lshlrev_b32 v12, 5, v12"); o(f"v_add_u32 v{d}, v12, v7")

    def voff_k(self, dst, row_s, row_add, jpar, ld_shift=None, ld_s=None, clamp=False):
        o = self.o
        if isinstance(jpar, tuple):
            o(f"s_and_b32 s62, s{jpar[1]}, 1"); o("s_lshl_b32 s62, s62, 2"); o("v_or_b32 v5, s62, v4")
        else:
            o(f"v_or_b32 v5, {(jpar & 1) << 2}, v4")
        o("v_xor_b32 v5, v5, v3"); o("v_lshlrev_b32 v5, 4, v5")
        o(f"v_add_u32 v6, s{row_s}, v2")
        if row_add: o(f"v_add_u32 v6, {row_add}, v6")
        if clamp: o("v_max_i32 v6, 0, v6")
        if ld_shift is not None: o(f"v_lshlrev_b32 v6, {ld_shift}, v6")
        else: o(f"v_mul_lo_u32 v6, v6, s{ld_s}")
        o(f"v_add_u32 v{dst}, v6, v5")
    def voff_n(self, dst, kk, col_s, ld_s):
        o = self.o
        o(f"v_add_u32 v6, {8*kk}, v2"); o(f"v_mul_lo_u32 v6, v6, s{ld_s}"); o(f"v_add_u32 v6, s{col_s}, v6")
        o("v_and_b32 v7, 1, v4"); o(f"v_or_b32 v7, {(kk & 1) << 1}, v7"); o("v_lshlrev_b32 v7, 1, v7")
        o("v_xor_b32 v7, v7, v3"); o("v_lshlrev_b32 v7, 4, v7"); o(f"v_add_u32 v{dst}, v6, v7")

    def ring_init(self, R, sk, nk, rot_s):
        o = self.o
        R.sk = sk; R.nk = nk
        o(f"s_mul_i32 s{sk}, s{rot_s}, {R.sstep}")
        if R.soff0: o(f"s_add_u32 s{sk}, s{sk}, {R.soff0}")

    def rot_compute(self, dst, nk, key='x'):
        o = self.o
        if 'norot' in self.opts or ('rot' + key) not in self.opts:
            o(f"s_mov_b32 s{dst}, 0"); return
        o(f"s_lshl_b32 s{dst}, s{S_JS}, 1"); o(f"s_and_b32 s50, s{S_I}, 3"); o("s_lshl_b32 s50, s50, 2"); o(f"s_add_u32 s{dst}, s{dst}, s50")
        o(f"s_lshr_b32 s50, s{S_I}, 2"); o(f"s_add_u32 s{dst}, s{dst}, s50"); o(f"s_and_b32 s{dst}, s{dst}, 15")
        if nk >= 28:
            o(f"s_mul_i32 s{dst}, s{dst}, {nk}"); o(f"s_lshr_b32 s{dst}, s{dst}, 4")

    def ring_issue(self, q, R, st, soff_reg=None):
        o = self.o
        for ins in R.instrs:
            sreg, imm, voff = ins[:3]; extra = ins[3] if len(ins) > 3 else 0
            if 'nodma' in self.opts and st >= 3: continue
            so = R.sk
            if extra:
                so = 57
                o(f"s_add_u32 s57, s{R.sk}, " + (f"s{extra[1]}" if isinstance(extra, tuple) else str(extra)))
            o(f"s_add_u32 m0, s{sreg}, {R.base + (st % R.ns) * R.slot + imm}")
            o(f"buffer_load_dwordx4 v{voff}, s[{R.srd}:{R.srd+3}], s{so} offen {R.sc} lds".replace("  ", " "))
            q.issue(f"{R.name}{st}")
        o(f"s_add_u32 s{R.sk}, s{R.sk}, {R.sstep}")
        if getattr(R, 'wrap', True):
            if getattr(R, 'base_s', None) is not None:
                o(f"s_sub_u32 s57, s{R.sk}, s{R.base_s}"); o(f"s_cmp_eq_u32 s57, {R.nk * R.sstep}"); o(f"s_cselect_b32 s{R.sk}, s{R.base_s}, s{R.sk}")
            else:
                o(f"s_cmp_eq_u32 s{R.sk}, {R.soff0 + R.nk * R.sstep}")
                o(f"s_cselect_b32 s{R.sk}, {R.soff0}, s{R.sk}")

    def prod_loop(self, q, NK, rings, hooks=None, pre_hooks=None, st_at=()):
        o = self.o
        hooks = hooks or {}; pre_hooks = pre_hooks or {}
        for R in rings: q.wait(f"{R.name}0")
        o("s_barrier")
        for kq in range(NK):
            if kq + 1 < NK:
                for R in rings: q.wait(f"{R.name}{kq+1}")
            if kq in pre_hooks: pre_hooks[kq]()
            o("s_barrier")
            if kq in st_at: self.stamp('p')
            for ri, R in enumerate(rings):
                if kq + R.ns < NK: self.ring_issue(q, R, kq + R.ns, 60 + ri)
            if kq in hooks: hooks[kq]()

    def p0_only(self):
        l = self.nl("skip")
        self.o(f"s_cmp_lg_u32 s{S_P}, 0"); self.o(f"s_cbranch_scc1 {l}")
        return l

    def flag_store(self, fid, grp_s, idx_s):
        o = self.o
        l = self.p0_only()
        o(f"s_lshl_b32 s50, s{grp_s}, 7"); o(f"s_lshl_b32 s51, s{idx_s}, 2"); o("s_add_u32 s50, s50, s51")
        o(f"s_add_u32 s50, s50, {FLG_OFF + fid*2048}")
        o(f"v_mov_b32 v8, s{S_TAG}"); o("v_mov_b32 v9, 0")
        o("s_mov_b64 s[52:53], exec"); o("s_mov_b64 exec, 1")
        o(f"buffer_store_dword v8, v9, {WSR}, s50 offen sc1")
        o("s_mov_b64 exec, s[52:53]")
        self.lab(l)

    def poll_addr(self, groups):
        o = self.o
        o("v_and_b32 v8, 15, v1"); o("v_lshlrev_b32 v8, 2, v8")
        mask = 0
        for gi, (fid, grp_s, m16) in enumerate(groups):
            o(f"s_lshl_b32 s50, s{grp_s}, 7"); o(f"s_add_u32 s50, s50, {FLG_OFF + fid*2048}")
            if gi == 0: o("v_mov_b32 v9, s50")
            else:
                o("v_mov_b32 v7, s50"); o(f"v_cmp_le_u32 vcc, {gi}, v4"); o("v_cndmask_b32 v9, v9, v7, vcc")
            mask |= m16 << (16 * gi)
        o("v_add_u32 v8, v8, v9")
        return mask

    def poll_chk(self, mask, ok):
        o = self.o
        lo, hi = mask & 0xffffffff, mask >> 32
        o(f"v_cmp_eq_u32 vcc, s{S_TAG}, v9")
        o(f"s_and_b32 s50, vcc_lo, {lo:#x}"); o(f"s_xor_b32 s50, s50, {lo:#x}")
        if hi:
            o(f"s_and_b32 s51, vcc_hi, {hi:#x}"); o(f"s_xor_b32 s51, s51, {hi:#x}"); o("s_or_b32 s50, s50, s51")
        else:
            o("s_cmp_eq_u32 s50, 0")
        if hi: o("s_cmp_eq_u32 s50, 0")
        o(f"s_cbranch_scc1 {ok}")

    def poll_spin(self, mask, ok):
        o = self.o
        lp = self.nl("spin")
        o("s_mov_b32 s52, 0")
        self.lab(lp)
        o(f"buffer_load_dword v9, v8, {WSR}, 0 offen sc1")
        o("s_waitcnt vmcnt(0)")
        self.poll_chk(mask, ok)
        o("s_sleep 1")
        o("s_add_u32 s52, s52, 1"); o(f"s_cmp_lt_u32 s52, {SPIN_MAX}"); o(f"s_cbranch_scc1 {lp}")

    def poll(self, groups):
        l = self.p0_only()
        mask = self.poll_addr(groups)
        ok = self.nl("ok")
        self.poll_spin(mask, ok)
        self.lab(ok); self.lab(l)

    def poll_issue(self, q, groups, name='poll'):
        l = self.p0_only()
        mask = self.poll_addr(groups)
        self.o(f"buffer_load_dword v9, v8, {WSR}, 0 offen sc1")
        self.lab(l)
        q.untracked(name)
        return mask

    def poll_finish(self, q, mask, name='poll'):
        l = self.p0_only()
        q.wait_un(name)
        ok = self.nl("ok")
        self.poll_chk(mask, ok)
        self.poll_spin(mask, ok)
        self.lab(ok); self.lab(l)

    def colsum_job(self, q, srd, ld_s, col_s, krow_s, dst_s, tag):
        o = self.o
        B = 64
        def loads():
            o(f"v_add_u32 v22, s{krow_s}, v2"); o(f"v_mul_lo_u32 v22, v22, s{ld_s}"); o("v_lshlrev_b32 v23, 4, v3"); o("v_add_u32 v22, v22, v23")
            o(f"s_lshl_b32 s53, s{ld_s}, 3")
            o(f"s_mov_b32 s54, s{col_s}")
            for u in range(8):
                o(f"buffer_load_dwordx4 v[{B+4*u}:{B+4*u+3}], v22, s[{srd}:{srd+3}], s54 offen"); q.issue(tag)
                if u < 7: o("s_add_u32 s54, s54, s53")
        def comp(u0, u1):
            def f():
                o("s_mov_b32 s52, 0x00003f80"); o("s_mov_b32 s53, 0x3f800000")
                for u in range(u0, u1):
                    for e in range(4):
                        if u == 0:
                            o(f"v_lshlrev_b32 v{96+2*e}, 16, v{B+e}"); o(f"v_and_b32 v{97+2*e}, 0xffff0000, v{B+e}")
                        else:
                            o(f"v_dot2c_f32_bf16 v{96+2*e}, s52, v{B+4*u+e}"); o(f"v_dot2c_f32_bf16 v{97+2*e}, s53, v{B+4*u+e}")
            return f
        def fin():
            for j in range(4): o(f"v_permlane32_swap_b32 v{96+2*j}, v{97+2*j}")
            for j in range(4): o(f"v_add_f32 v{104+j}, v{96+2*j}, v{97+2*j}")
            for j in range(2): o(f"v_permlane16_swap_b32 v{104+2*j}, v{105+2*j}")
            for j in range(2): o(f"v_add_f32 v{96+j}, v{104+2*j}, v{105+2*j}")
            for j in range(2): o(f"v_add_f32_dpp v{96+j}, v{96+j}, v{96+j} row_ror:8 row_mask:0xf bank_mask:0xf")
            o("v_lshrrev_b32 v98, 4, v1"); o("v_and_b32 v99, 1, v98"); o("v_lshlrev_b32 v99, 1, v99"); o("v_lshrrev_b32 v98, 1, v98"); o("v_or_b32 v98, v98, v99")
            o("v_lshlrev_b32 v99, 3, v3"); o("v_add_u32 v98, v98, v99")
            o("v_and_b32 v99, 8, v1"); o("v_lshrrev_b32 v100, 1, v99"); o("v_add_u32 v98, v98, v100"); o("v_lshlrev_b32 v98, 2, v98")
            o("v_cmp_ne_u32 vcc, 0, v99"); o("v_cndmask_b32 v96, v96, v97, vcc")
            o(f"buffer_store_dword v96, v98, {WSR}, s{dst_s} offen sc1"); q.issue(tag + 'st')
        return loads, comp, fin

    G1_XB, G1_XS, G1_WB, G1_WS = 8192, 18432, 63488, 24576
    def g1_consumer(self, wm):
        o = self.o
        ACC = 16
        VX0, VW0 = 8, 10
        def acc(wf, r): return ACC + (wf * 4 + r) * 4
        HAL = ACC + 96
        def fx(st, f): return ar(st * 44 + f * 4, 4)
        def fw(st, wf, h=None):
            b = st * 44 + 20 + wf * 4
            return ar(b, 4) if h is None else ar(b + 2 * h, 2)
        self.addr_k(VX0, self.G1_XB)
        o(f"s_lshr_b32 s50, s{S_WAVE}, 1"); o("s_lshl_b32 s50, s50, 1"); o("s_add_u32 s51, s50, 1")
        self.addr_n([VW0, VW0 + 1], [('s', 50), ('s', 51)], self.G1_WB)
        for r in range(104): o(f"v_mov_b32 v{ACC+r}, 0")
        def reads(st, j):
            vx = VX0 + j
            xs = [f"ds_read_b128 {fx(st, r)}, v{vx} offset:{(1+4*wm+r)*2048}" for r in range(4)]
            xh = f"ds_read_b128 {fx(st, 4)}, v{vx} offset:0"
            W = []
            for wf in range(6):
                qq, pp = wf >> 1, wf & 1
                W.append([f"ds_read_b64_tr_b16 {fw(st, wf, h)}, v{VW0+pp} offset:{qq*8192+j*4096+h*512}" for h in range(2)])
            return [xs[0]] + W[0] + [xs[1]] + W[1] + [xs[2], xs[3]] + W[2] + W[3] + [xh] + W[4] + W[5]
        def mfmas(st):
            L = []
            for wf in range(6):
                for r in range(4):
                    a = vr(acc(wf, r), 4)
                    if wf < 4: L.append(f"v_mfma_f32_16x16x32_bf16 {a}, {fw(st, wf)}, {fx(st, r)}, {a}")
                    else:      L.append(f"v_mfma_f32_16x16x32_bf16 {a}, {fx(st, r)}, {fw(st, wf)}, {a}")
                if wf == 3 and wm == 0:
                    for t in range(2):
                        a = vr(HAL + 4 * t, 4); L.append(f"v_mfma_f32_16x16x32_bf16 {a}, {fw(st, 2+t)}, {fx(st, 4)}, {a}")
            if wm == 1:
                for t in range(2):
                    a = vr(HAL + 4 * t, 4); L.append(f"v_mfma_f32_16x16x32_bf16 {a}, {fx(st, 4)}, {fw(st, 4+t)}, {a}")
            return L
        self.cons_loop(f"g1_loop{wm}", 16, reads, mfmas,
                       [([VX0, VX0 + 1], 3, self.G1_XS, 65, 66), ([VW0, VW0 + 1], 3, self.G1_WS, 67, 62)], span0=21, span1=23)
        self.stamp('c')
        ST_A, ST_B, CS, EX = 0, 576, 1152, 2048
        TA = 140; VS = [120, 130]
        o("s_barrier")
        o("v_lshlrev_b32 v4, 2, v3"); o("v_lshlrev_b32 v5, 4, v2")
        o(f"s_lshr_b32 s50, s{S_WAVE}, 1"); o("s_lshl_b32 s51, s50, 7")
        o("v_add_u32 v6, s51, v5"); o("v_add_u32 v7, s51, v4")
        for wf in range(4):
            qq, pp = wf >> 1, wf & 1
            o(f"ds_read_b128 v[{TA+4*wf}:{TA+4*wf+3}], v6 offset:{CS + (qq*64 + pp*16)*4}")
        for pp in range(2): o(f"ds_read_b32 v{TA+16+pp}, v7 offset:{CS + (128 + pp*16)*4}")
        blocks = list(range(4)) + ([-1] if wm == 0 else [])
        vblocks = list(range(4)) + ([-1] if wm == 1 else [])
        def rbof(r): return 0 if r < 0 else 1 + 4 * wm + r
        for bi, r in enumerate(blocks):
            o(f"ds_read_b32 a{2*bi}, v4 offset:{ST_A + rbof(r)*64}"); o(f"ds_read_b32 a{2*bi+1}, v4 offset:{ST_B + rbof(r)*64}")
        for bi, r in enumerate(vblocks):
            o(f"ds_read_b128 a[{16+8*bi}:{19+8*bi}], v5 offset:{ST_A + rbof(r)*64}"); o(f"ds_read_b128 a[{20+8*bi}:{23+8*bi}], v5 offset:{ST_B + rbof(r)*64}")
        o(f"s_mov_b32 s52, {f2u((32 ** -0.5) * LOG2E)}")
        o("s_waitcnt lgkmcnt(0)")
        for bi, r in enumerate(blocks):
            o(f"v_accvgpr_read_b32 v12, a{2*bi}"); o(f"v_accvgpr_read_b32 v14, a{2*bi+1}")
            if r >= 0:
                o("v_mul_f32 v158, s52, v12"); o("v_mul_f32 v120, s52, v14")
                for (wf0, dstb, a, b) in ((0, acc(0, r), 158, 120), (2, acc(2, r), 12, 14)):
                    for t in range(2):
                        wf = wf0 + t; C = TA + 4 * wf
                        for e in (0, 2): o(f"v_pk_mul_f32 v[{122+4*t+e}:{123+4*t+e}], v[{C+e}:{C+e+1}], v[{b}:{b+1}] op_sel_hi:[1,0]")
                    for t in range(2):
                        wf = wf0 + t; A = acc(wf, r)
                        for e in (0, 2): o(f"v_pk_fma_f32 v[{A+e}:{A+e+1}], v[{A+e}:{A+e+1}], v[{a}:{a+1}], v[{122+4*t+e}:{123+4*t+e}] op_sel_hi:[1,0,1]")
                    A0 = acc(wf0, r); A1 = acc(wf0 + 1, r)
                    o(f"v_cvt_pk_bf16_f32 v{dstb}, v{A0}, v{A0+1}"); o(f"v_cvt_pk_bf16_f32 v{dstb+1}, v{A0+2}, v{A0+3}")
                    o(f"v_cvt_pk_bf16_f32 v{dstb+2}, v{A1}, v{A1+1}"); o(f"v_cvt_pk_bf16_f32 v{dstb+3}, v{A1+2}, v{A1+3}")
            else:
                for t in range(2):
                    C = TA + 4 * (2 + t)
                    for e in (0, 2): o(f"v_pk_mul_f32 v[{122+4*t+e}:{123+4*t+e}], v[{C+e}:{C+e+1}], v[14:15] op_sel_hi:[1,0]")
                for t in range(2):
                    A = HAL + 4 * t
                    for e in (0, 2): o(f"v_pk_fma_f32 v[{A+e}:{A+e+1}], v[{A+e}:{A+e+1}], v[12:13], v[{122+4*t+e}:{123+4*t+e}] op_sel_hi:[1,0,1]")
                o(f"v_cvt_pk_bf16_f32 v{HAL}, v{HAL}, v{HAL+1}"); o(f"v_cvt_pk_bf16_f32 v{HAL+1}, v{HAL+2}, v{HAL+3}")
                o(f"v_cvt_pk_bf16_f32 v{HAL+2}, v{HAL+4}, v{HAL+5}"); o(f"v_cvt_pk_bf16_f32 v{HAL+3}, v{HAL+6}, v{HAL+7}")
        order = [vblocks.index(3)] + ([vblocks.index(-1)] if wm == 1 else []) + [vblocks.index(x) for x in (0, 1, 2)]
        o(f"v_mov_b32 v40, v{TA+16}"); o(f"v_mov_b32 v42, v{TA+17}")
        o(f"s_mul_i32 s51, s50, 3072"); o("v_lshlrev_b32 v6, 4, v1"); o("v_add_u32 v6, s51, v6")
        for oi, bi in enumerate(order):
            r = vblocks[bi]
            for e in range(8): o(f"v_accvgpr_read_b32 v{32+e}, a{16+8*bi+e}")
            for db in range(2):
                for e in (0, 2): o(f"v_pk_mul_f32 v[{64+4*db+e}:{65+4*db+e}], v[{36+e}:{37+e}], v[{40+2*db}:{41+2*db}] op_sel_hi:[1,0]")
            for db in range(2):
                A = acc(4 + db, r) if r >= 0 else HAL + 4 * db
                for e in (0, 2): o(f"v_pk_fma_f32 v[{A+e}:{A+e+1}], v[{A+e}:{A+e+1}], v[{32+e}:{33+e}], v[{64+4*db+e}:{65+4*db+e}]")
            for db in range(2):
                A = acc(4 + db, r) if r >= 0 else HAL + 4 * db
                d = VS[db] + 2 + 2 * r if r >= 0 else 44 + 2 * db
                o(f"v_cvt_pk_bf16_f32 v{d}, v{A}, v{A+1}"); o(f"v_cvt_pk_bf16_f32 v{d+1}, v{A+2}, v{A+3}")
            if wm == 0 and r == 3:
                o(f"ds_write_b128 v6, v[{acc(2,3)}:{acc(2,3)+3}] offset:{EX + 1024}")
                o(f"ds_write_b64 v6, v[{VS[0]+8}:{VS[0]+9}] offset:{EX + 2048}"); o(f"ds_write_b64 v6, v[{VS[1]+8}:{VS[1]+9}] offset:{EX + 2056}")
            if wm == 1 and r == -1:
                o(f"ds_write_b128 v6, v[44:47] offset:{EX}")
        o("s_waitcnt lgkmcnt(0)"); o("s_barrier")
        KPREV = HAL
        if wm == 0:
            o(f"ds_read_b64 v[{VS[0]}:{VS[0]+1}], v6 offset:{EX}"); o(f"ds_read_b64 v[{VS[1]}:{VS[1]+1}], v6 offset:{EX+8}")
        else:
            o(f"ds_read_b128 v[{KPREV}:{KPREV+3}], v6 offset:{EX + 1024}")
            o(f"ds_read_b64 v[{VS[0]}:{VS[0]+1}], v6 offset:{EX+2048}"); o(f"ds_read_b64 v[{VS[1]}:{VS[1]+1}], v6 offset:{EX+2056}")
        MP, MC = 140, 144
        o(f"s_mov_b32 s53, {f2u(-1e30)}")
        o("v_lshlrev_b32 v12, 2, v2"); o("v_sub_u32 v12, v12, v3"); o("v_mov_b32 v15, s53"); o("v_mov_b32 v158, 0")
        for e in range(4):
            o(f"v_add_u32 v13, {e}, v12"); o("v_and_b32 v14, 1, v13")
            o("v_cmp_le_i32 vcc, 2, v13"); o("v_cmp_eq_u32 s[54:55], 0, v14"); o("s_and_b64 vcc, vcc, s[54:55]")
            o(f"v_cndmask_b32 v{MP+e}, v15, v158, vcc")
            o("v_cmp_ge_i32 vcc, 0, v13"); o("s_and_b64 vcc, vcc, s[54:55]")
            o(f"v_cndmask_b32 v{MC+e}, v15, v158, vcc")
        def Kf(r): return KPREV if r < 0 else acc(2, r)
        for r in (1, 2, 3, 0):
            if r == 0: o("s_waitcnt lgkmcnt(0)")
            S = 80 + 8 * r
            o(f"v_mfma_f32_16x16x32_bf16 v[{S+4}:{S+7}], v[{Kf(r)}:{Kf(r)+3}], v[{acc(0,r)}:{acc(0,r)+3}], 0")
            o(f"v_mfma_f32_16x16x32_bf16 v[{S}:{S+3}], v[{Kf(r-1)}:{Kf(r-1)+3}], v[{acc(0,r)}:{acc(0,r)+3}], 0")
        if wm == 0:
            o(f"s_cmp_eq_u32 s{S_I}, 0"); o("s_cselect_b32 s54, s53, 0")
        MX = [32, 33, 34, 35]; TM = [36, 37, 38, 39]; SM = [40, 41, 42, 43]
        RO = (1, 2, 3, 0)
        for r in RO:
            S = 80 + 8 * r
            for e in range(0, 4, 2):
                o(f"v_pk_add_f32 v[{S+e}:{S+e+1}], v[{S+e}:{S+e+1}], v[{MP+e}:{MP+e+1}]"); o(f"v_pk_add_f32 v[{S+4+e}:{S+5+e}], v[{S+4+e}:{S+5+e}], v[{MC+e}:{MC+e+1}]")
            if wm == 0 and r == 0:
                for e in range(4): o(f"v_add_f32 v{S+e}, s54, v{S+e}")
        for r in RO:
            S = 80 + 8 * r
            o(f"v_max3_f32 v{MX[r]}, v{S}, v{S+1}, v{S+2}"); o(f"v_max3_f32 v{TM[r]}, v{S+3}, v{S+4}, v{S+5}")
        for r in RO:
            S = 80 + 8 * r
            o(f"v_max3_f32 v{MX[r]}, v{MX[r]}, v{S+6}, v{S+7}")
        for r in RO: o(f"v_max_f32 v{MX[r]}, v{MX[r]}, v{TM[r]}")
        self.bfly("v_max_f32", [MX[r] for r in RO], [TM[r] for r in RO], bits=(5, 4))
        for r in RO:
            S = 80 + 8 * r
            for e in range(8): o(f"v_sub_f32 v{S+e}, v{S+e}, v{MX[r]}")
        for r in RO:
            S = 80 + 8 * r
            for e in range(8): o(f"v_exp_f32 v{S+e}, v{S+e}")
        for r in RO:
            S = 80 + 8 * r; P = 64 + 4 * r
            for e in range(4): o(f"v_cvt_pk_bf16_f32 v{P+e}, v{S+2*e}, v{S+2*e+1}")
        for r in RO:
            S = 80 + 8 * r
            o(f"v_pk_add_f32 v[{S}:{S+1}], v[{S}:{S+1}], v[{S+2}:{S+3}]"); o(f"v_pk_add_f32 v[{S+4}:{S+5}], v[{S+4}:{S+5}], v[{S+6}:{S+7}]")
        for r in RO:
            S = 80 + 8 * r
            o(f"v_pk_add_f32 v[{S}:{S+1}], v[{S}:{S+1}], v[{S+4}:{S+5}]")
        for r in RO:
            S = 80 + 8 * r
            o(f"v_add_f32 v{SM[r]}, v{S}, v{S+1}")
        for r in RO:
            S = 80 + 8 * r; P = 64 + 4 * r
            for db in range(2):
                o(f"v_mfma_f32_16x16x32_bf16 v[{S+4*db}:{S+4*db+3}], v[{VS[db]+2*r}:{VS[db]+2*r+3}], v[{P}:{P+3}], 0")
        self.bfly("v_add_f32", [SM[r] for r in RO], [TM[r] for r in RO], bits=(5, 4))
        for r in RO: o(f"v_rcp_f32 v{SM[r]}, v{SM[r]}")
        o(f"s_lshl_b32 s51, s{S_I}, 7"); o(f"s_add_u32 s51, s51, {64*wm}")
        o("v_add_u32 v12, s51, v3"); o("v_lshlrev_b32 v12, 11, v12")
        o("v_and_b32 v13, 1, v2"); o("v_lshlrev_b32 v13, 5, v13"); o("v_lshrrev_b32 v14, 1, v2"); o("v_lshlrev_b32 v14, 4, v14")
        o("v_add3_u32 v12, v12, v13, v14")
        o(f"s_lshl_b32 s51, s{S_M}, 7"); o("s_lshl_b32 s52, s50, 6"); o("s_add_u32 s51, s51, s52"); o(f"s_add_u32 s51, s51, {O_OFF}")
        for r in RO:
            S = 80 + 8 * r; P = 64 + 4 * r
            for e in range(0, 8, 2):
                o(f"v_pk_mul_f32 v[{S+e}:{S+e+1}], v[{S+e}:{S+e+1}], v[{SM[r] & ~1}:{(SM[r] & ~1)+1}] op_sel:[0,{SM[r]&1}] op_sel_hi:[1,{SM[r]&1}]")
            o(f"v_cvt_pk_bf16_f32 v{P}, v{S}, v{S+1}"); o(f"v_cvt_pk_bf16_f32 v{P+1}, v{S+2}, v{S+3}")
            o(f"v_cvt_pk_bf16_f32 v{P+2}, v{S+4}, v{S+5}"); o(f"v_cvt_pk_bf16_f32 v{P+3}, v{S+6}, v{S+7}")
            o(f"v_permlane16_swap_b32 v{P}, v{P+2}"); o(f"v_permlane16_swap_b32 v{P+1}, v{P+3}")
            o(f"s_add_u32 s52, s51, {r*16*2048}")
            o(f"buffer_store_dwordx4 v[{P}:{P+3}], v12, {WSR}, s52 offen sc1")
        o("s_waitcnt vmcnt(0)")
        self.stamp('c')
        o("s_barrier")

    def prod_lane_consts(self):
        o = self.o
        o("v_lshrrev_b32 v2, 3, v1"); o("v_and_b32 v3, 7, v1"); o("v_lshrrev_b32 v4, 4, v1"); o("v_mov_b32 v8, 0")

    def g2_rings(self):
        o = self.o
        W = Ring("b", 6, 8192, 16384, R_M, 64 * 2048)
        X = Ring("a", 6, 106496, 8192, R_WS, 128, "sc1"); X.soff0 = O_OFF
        self.srd(R_M, P_WO, 1024*1024*2)
        o(f"s_and_b32 s52, s{S_JS}, 1"); o("s_lshl_b32 s52, s52, 6"); o(f"s_lshl_b32 s53, s{S_I}, 7"); o("s_add_u32 s52, s52, s53")
        o(f"s_lshl_b32 s53, s{S_P}, 4"); o("s_add_u32 s52, s52, s53")
        for t in range(2): self.voff_k(30 + t, 52, 8 * t, t, ld_shift=11)
        o(f"s_lshr_b32 s53, s{S_JS}, 1"); o(f"s_lshl_b32 s54, s{S_H}, 2"); o("s_add_u32 s53, s53, s54"); o("s_lshl_b32 s53, s53, 8")
        o(f"s_lshr_b32 s54, s{S_P}, 1"); o("s_lshl_b32 s54, s54, 7"); o("s_add_u32 s53, s53, s54")
        o("s_mov_b32 s55, 2048")
        o(f"s_and_b32 s56, s{S_P}, 1"); o("s_lshl_b32 s56, s56, 16"); o("s_add_u32 s53, s53, s56")
        for t in range(4): self.voff_n(32 + t, t, 53, 55)
        o(f"s_lshl_b32 s58, s{S_P}, 11")
        o(f"s_lshl_b32 s59, s{S_P}, 12")
        X.instrs = [(58, t * 1024, 30 + t) for t in range(2)]
        W.instrs = [(59, t * 1024, 32 + t) for t in range(4)]
        self.rot_compute(62, 16, '1'); self.ring_init(X, 60, 16, 62); self.ring_init(W, 61, 16, 62)
        return X, W

    def g1_producer(self):
        o = self.o
        q = Q(self)
        p = S_P
        o(f"s_sub_u32 s{p}, s{S_WAVE}, 4")
        o("s_setprio 3")
        o(f"s_add_u32 s50, s{P_WS}, {EPOCH_OFF}"); o(f"s_addc_u32 s51, s{P_WS+1}, 0"); o(f"s_load_dword s{S_TAG}, s[50:51], 0")
        self.srd(R_X, P_X, 2048*1024*2); self.srd(R_W, P_WQKV, 1024*3072*2)
        self.prod_lane_consts()
        X = Ring("x", 3, self.G1_XB, self.G1_XS, R_X, 128)
        W = Ring("w", 3, self.G1_WB, self.G1_WS, R_W, 64 * 6144)
        o(f"s_and_b32 s52, s{p}, 1"); o("s_lshl_b32 s53, s52, 2"); o("v_or_b32 v5, s53, v4"); o("v_xor_b32 v5, v5, v3"); o("v_lshlrev_b32 v5, 4, v5")
        o("v_lshlrev_b32 v6, 11, v2"); o("v_add_u32 v10, v6, v5")
        o(f"s_lshl_b32 s54, s{S_I}, 7"); o(f"s_lshl_b32 s55, s{p}, 3"); o("s_add_u32 s55, s55, s54"); o("s_add_u32 s55, s55, 16")
        o("s_lshl_b32 s59, s55, 11")
        o("s_sub_i32 s56, s55, 32"); o("s_max_i32 s56, s56, 0"); o("s_sub_u32 s56, s56, s55"); o("s_lshl_b32 s66, s56, 11")
        o("s_lshl_b32 s56, s52, 3"); o("s_add_u32 s56, s56, s54"); o("s_add_u32 s56, s56, 112"); o("s_sub_u32 s56, s56, s55"); o("s_lshl_b32 s67, s56, 11")
        o("v_mul_u32_u24 v6, 6144, v2"); o("v_and_b32 v7, 1, v4"); o("v_lshlrev_b32 v7, 1, v7"); o("v_xor_b32 v7, v7, v3")
        o("v_lshlrev_b32 v5, 4, v7"); o("v_add_u32 v15, v6, v5"); o("v_xor_b32 v7, 4, v7"); o("v_lshlrev_b32 v5, 4, v7"); o("v_add_u32 v16, v6, v5")
        o(f"s_mul_i32 s63, s{p}, {2*8*6144}"); o(f"s_lshl_b32 s56, s{S_M}, 7"); o("s_add_u32 s63, s63, s56")
        o(f"s_lshl_b32 s58, s{p}, 10")
        o(f"s_and_b32 s65, s{p}, 1"); o("s_add_u32 s65, s65, 16"); o("s_lshl_b32 s65, s65, 10")
        o(f"s_lshl_b32 s64, s{p}, 11")
        X.instrs = [(58, 0, 10, ('s', 66))] + [(58, t * 4096, 10, (t - 1) * 65536) for t in range(1, 4)] + [(65, 0, 10, ('s', 67))]
        W.instrs = [(64, qq * 8192 + u * 1024, 15 + u, qq * 2048 + u * 49152) for qq in range(3) for u in range(2)]
        self.rot_compute(62, 16, '1')
        X.sk = 60; X.nk = 16; X.base_s = 59; W.sk = 61; W.nk = 16; W.base_s = 63
        o("s_lshl_b32 s60, s62, 7"); o("s_add_u32 s60, s60, s59"); o(f"s_mul_i32 s61, s62, {64*6144}"); o("s_add_u32 s61, s61, s63")
        for st in range(3):
            self.ring_issue(q, X, st); self.ring_issue(q, W, st)
        o(f"s_lshl_b32 s52, s{S_I}, 7"); o(f"s_lshl_b32 s53, s{S_M}, 3"); o("s_add_u32 s52, s52, s53"); o(f"s_lshl_b32 s53, s{p}, 1"); o("s_add_u32 s70, s52, s53")
        o("s_lshl_b32 s52, s70, 11"); o("v_lshlrev_b32 v21, 4, v1")
        for t in range(4):
            o(f"buffer_load_dwordx4 v[{24+4*t}:{27+4*t}], v21, s[{R_X}:{R_X+3}], s52 offen offset:{t*1024}"); q.issue('SJ')
        o(f"s_min_u32 s71, s{p}, 2"); o("s_lshl_b32 s52, s71, 11"); o(f"s_lshl_b32 s53, s{S_M}, 7"); o("s_add_u32 s55, s52, s53")
        o(f"s_lshl_b32 s52, s{S_M}, 4"); o(f"s_add_u32 s52, s52, s{S_I}"); o("s_mul_i32 s52, s52, 768"); o("s_lshl_b32 s53, s71, 8"); o("s_add_u32 s52, s52, s53"); o(f"s_add_u32 s71, s52, {CS1_OFF}")
        o(f"s_lshl_b32 s52, s{S_I}, 6"); o("s_mov_b32 s56, 6144")
        cl, cc, cf = self.colsum_job(q, R_W, 56, 55, 52, 71, 'SJ')
        cl()
        def c_x1():
            o("s_mov_b32 s52, 0x3f803f80")
            for r in range(2):
                src = 24 + 8 * r
                o(f"v_mov_b32 v{40+r}, 0"); o(f"v_mov_b32 v{42+r}, 0")
            for e in range(8):
                for r in range(2):
                    src = 24 + 8 * r
                    o(f"v_dot2c_f32_bf16 v{40+r}, s52, v{src+e}"); o(f"v_dot2c_f32_bf16 v{42+r}, v{src+e}, v{src+e}")
        def c_x2():
            self.bfly("v_add_f32", [40, 41, 42, 43], [44, 45, 46, 47])
        def c_x3():
            o(f"s_mov_b32 s52, {f2u(1/1024.)}"); o(f"s_mov_b32 s53, {f2u(1e-5)}")
            for r in range(2):
                o(f"v_mul_f32 v{40+r}, s52, v{40+r}")
                o(f"v_mul_f32 v{42+r}, s52, v{42+r}")
                o(f"v_fma_f32 v{42+r}, -v{40+r}, v{40+r}, v{42+r}")
                o(f"v_max_f32 v{42+r}, 0, v{42+r}"); o(f"v_add_f32 v{42+r}, s53, v{42+r}"); o(f"v_rsq_f32 v{42+r}, v{42+r}")
                o(f"v_mul_f32 v{40+r}, v{40+r}, v{42+r}"); o(f"v_sub_f32 v{40+r}, 0, v{40+r}")
            o("v_cmp_eq_u32 vcc, 1, v1"); o("v_cndmask_b32 v44, v42, v43, vcc")
            o("v_cmp_eq_u32 vcc, 2, v1"); o("v_cndmask_b32 v44, v44, v40, vcc")
            o("v_cmp_eq_u32 vcc, 3, v1"); o("v_cndmask_b32 v44, v44, v41, vcc")
            o("v_and_b32 v45, 1, v1"); o("v_lshlrev_b32 v45, 2, v45"); o("v_lshrrev_b32 v46, 1, v1"); o("v_lshlrev_b32 v46, 13, v46"); o("v_add_u32 v45, v45, v46")
            o(f"s_lshl_b32 s52, s70, 2"); o(f"s_add_u32 s52, s52, {ST1_OFF}")
            o("s_mov_b64 s[54:55], exec"); o("s_mov_b64 exec, 15")
            o(f"buffer_store_dword v44, v45, {WSR}, s52 offen sc1"); q.issue('SJst')
            o("v_mov_b32 v44, 0"); o("v_lshlrev_b32 v45, 2, v1"); o(f"s_lshl_b32 s52, s70, 3"); o(f"s_add_u32 s52, s52, {ST3_OFF}")
            o(f"buffer_store_dword v44, v45, {WSR}, s52 offen sc1"); q.issue('SJst')
            o("s_mov_b64 exec, s[54:55]")
        def tagfix():
            o("s_waitcnt lgkmcnt(0)")
            o(f"s_mul_i32 s{S_TAG}, s{S_TAG}, 1664525"); o(f"s_add_u32 s{S_TAG}, s{S_TAG}, 1013904223")
        def seq(*fs):
            def f():
                for x in fs: x()
            return f
        pm = {}
        def p_issue(): pm['m'] = self.poll_issue(q, [(F_S1R, S_I, 0xffff), (F_S1R, 98, 0xffff), (F_S1C, S_M, 0xffff)])
        def p_fin(): self.poll_finish(q, pm['m'])
        hooks = {
            1: seq(tagfix, lambda: q.wait('SJ'), c_x1),
            2: seq(c_x2, cc(0, 2)),
            3: seq(c_x3, cc(2, 5)),
            4: seq(cc(5, 8), cf),
            6: lambda: q.wait('SJst'),
            7: seq(lambda: self.flag_store(F_S1R, S_I, S_M), lambda: self.flag_store(F_S1C, S_M, S_I),
                   lambda: (o(f"s_max_u32 s98, s{S_I}, 1"), o("s_sub_u32 s98, s98, 1"))),
            10: p_issue, 12: p_fin,
        }
        def g_loads():
            o(f"s_lshl_b32 s52, s{S_I}, 9"); o("s_sub_u32 s52, s52, 64")
            o("v_lshlrev_b32 v26, 4, v1"); o("v_add_u32 v26, s52, v26"); o("v_max_i32 v26, 0, v26")
            o(f"s_and_b32 s53, s{p}, 1"); o("s_lshl_b32 s53, s53, 13"); o(f"s_add_u32 s53, s53, {ST1_OFF}")
            o(f"buffer_load_dwordx4 v[28:31], v26, {WSR}, s53 offen sc1"); q.issue('ga')
            o(f"s_min_u32 s54, s{p}, 2"); o("s_lshl_b32 s54, s54, 8")
            o(f"s_lshl_b32 s53, s{S_M}, 4"); o("s_mul_i32 s53, s53, 768"); o("s_add_u32 s53, s53, s54"); o(f"s_add_u32 s53, s53, {CS1_OFF}")
            o("v_mul_u32_u24 v27, 768, v4"); o("v_and_b32 v40, 15, v1"); o("v_lshlrev_b32 v40, 4, v40"); o("v_add_u32 v27, v27, v40")
            for t in range(4):
                o(f"buffer_load_dwordx4 v[{32+4*t}:{35+4*t}], v27, {WSR}, s53 offen sc1"); q.issue('ga')
                if t < 3: o("s_add_u32 s53, s53, 3072")
        def g_fin():
            q.wait('ga')
            o(f"s_and_b32 s53, s{p}, 1"); o("s_mul_i32 s53, s53, 576"); o("v_lshlrev_b32 v26, 4, v1"); o("v_add_u32 v26, s53, v26")
            o("v_cmp_gt_u32 vcc, 36, v1"); o("s_and_saveexec_b64 s[54:55], vcc")
            o(f"ds_write_b128 v26, v[28:31] offset:0")
            o("s_mov_b64 exec, s[54:55]")
            for e in range(4):
                o(f"v_add_f32 v{32+e}, v{32+e}, v{36+e}"); o(f"v_add_f32 v{40+e}, v{40+e}, v{44+e}")
            for e in range(4): o(f"v_add_f32 v{32+e}, v{32+e}, v{40+e}")
            self.bfly("v_add_f32", [32, 33, 34, 35], [36, 37, 38, 39], bits=(5, 4))
            o(f"s_min_u32 s54, s{p}, 2"); o("s_lshl_b32 s54, s54, 8"); o("v_and_b32 v40, 15, v1"); o("v_lshlrev_b32 v40, 4, v40"); o("v_add_u32 v40, s54, v40")
            o(f"ds_write_b128 v40, v[32:35] offset:1152")
            o("s_waitcnt lgkmcnt(0)")
        def touch1():
            self.srd(R_M, P_WSP, 2048*2048*2)
            o("s_lshl_b32 s52, s2, 15"); o(f"s_lshl_b32 s53, s{p}, 13"); o("s_add_u32 s52, s52, s53")
            o("v_lshlrev_b32 v49, 7, v1")
            o(f"buffer_load_dword v50, v49, s[{R_M}:{R_M+3}], s52 offen"); q.issue('touch')
        def touch2():
            o(f"s_cmp_lt_u32 s{p}, 2")
            o(f"s_cselect_b32 s{R_M}, s{P_WOUT}, s{P_WO}"); o(f"s_cselect_b32 s{R_M+1}, s{P_WOUT+1}, s{P_WO+1}"); o(f"s_and_b32 s{R_M+1}, s{R_M+1}, 0xffff")
            o(f"s_mov_b32 s52, {1792*1024*2}"); o(f"s_cselect_b32 s{R_M+2}, s52, {1024*1024*2}") if False else None
            o(f"s_cmp_lt_u32 s{p}, 2"); o(f"s_mov_b32 s52, {1024*1024*2}"); o(f"s_cselect_b32 s{R_M+2}, {1792*1024*2}, s52"); o(f"s_mov_b32 s{R_M+3}, 0x20000")
            o("s_mul_i32 s52, s2, 14336"); o(f"s_lshl_b32 s53, s{p}, 13"); o("s_add_u32 s52, s52, s53"); o("s_lshl_b32 s53, s2, 13")
            o(f"s_cmp_lt_u32 s{p}, 2"); o("s_cselect_b32 s52, s52, s53")
            o(f"buffer_load_dword v50, v49, s[{R_M}:{R_M+3}], s52 offen"); q.issue('touch')
        if 'notouch' not in self.opts:
            hooks[14] = seq(touch1, touch2)
        hooks[13] = g_loads
        hooks[15] = g_fin
        self.prod_loop(q, 16, [X, W], hooks, st_at=((0, 2, 4, 6, 9, 10, 11, 12, 13, 15) if 'k1' in self.opts else ()))
        o("s_barrier")
        rings = None
        if self.upto >= 2:
            X2, W2 = self.g2_rings()
            for st in range(W2.ns): self.ring_issue(q, W2, st)
            rings = (X2, W2)
        c3 = self.upto >= 3
        if c3:
            self.srd(R_X, P_WIN, 1024*3584*2)
            o("s_mov_b32 s63, 7168"); o(f"s_lshl_b32 s64, s{S_I}, 6")
            o(f"s_min_u32 s52, s{S_J3}, 13"); o("s_lshl_b32 s52, s52, 8")
            o(f"s_and_b32 s53, s{p}, 1"); o("s_lshl_b32 s53, s53, 7"); o("s_add_u32 s52, s52, s53")
            o(f"s_lshr_b32 s53, s{p}, 1"); o("s_mul_i32 s53, s53, 3584"); o("s_add_u32 s65, s52, s53")
            o(f"s_lshl_b32 s52, s{S_M}, 4"); o(f"s_add_u32 s52, s52, s{S_I}"); o("s_lshl_b32 s52, s52, 10"); o(f"s_lshl_b32 s53, s{p}, 8"); o("s_add_u32 s52, s52, s53"); o(f"s_add_u32 s66, s52, {CS3_OFF}")
            cl, cc, cf = self.colsum_job(q, R_X, 63, 65, 64, 66, 'C3')
            cl()
        o("s_barrier")
        if c3:
            q.wait('C3'); cc(0, 8)(); cf()
        o("s_barrier")
        self.flag_store(F_G1, S_I, S_M)
        self.stamp('p')
        return q, rings

    def g25_consumer(self, which):
        o = self.o
        g5 = which == 5
        NK = 28 if g5 else 16
        XB, XNS = (16384, 4) if g5 else (106496, 6)
        WB, WNS = (49152, 7) if g5 else (8192, 6)
        ACC = 16; VX0, VW0 = 8, 144
        RES = 48
        def acc(rb, cb): return ACC + (rb * 4 + cb) * 4
        def fx(st, f): return ar(st * 24 + f * 4, 4)
        def fw(st, cb, h=None):
            b = st * 24 + 8 + cb * 4
            return ar(b, 4) if h is None else ar(b + 2 * h, 2)
        o(f"s_and_b32 s50, s{S_WAVE}, 1"); o("s_lshl_b32 s50, s50, 12")
        self.addr_k(VX0, XB, 50)
        o(f"s_lshr_b32 s51, s{S_WAVE}, 1"); o("s_lshl_b32 s51, s51, 13")
        self.addr_n([VW0 + i for i in range(4)], [0, 1, 2, 3], WB, 51)
        for r in range(32): o(f"v_mov_b32 v{ACC+r}, 0")
        o(f"s_and_b32 s52, s{S_JS}, 1"); o("s_lshl_b32 s52, s52, 6"); o(f"s_lshl_b32 s53, s{S_I}, 7"); o("s_add_u32 s52, s52, s53")
        o(f"s_and_b32 s53, s{S_WAVE}, 1"); o("s_lshl_b32 s53, s53, 5"); o("s_add_u32 s52, s52, s53")
        o(f"s_lshr_b32 s53, s{S_JS}, 1"); o(f"s_lshl_b32 s54, s{S_H}, 2"); o("s_add_u32 s53, s53, s54")
        o("s_lshl_b32 s54, s53, 7"); o(f"s_lshr_b32 s55, s{S_WAVE}, 1"); o("s_lshl_b32 s55, s55, 6"); o("s_add_u32 s54, s54, s55")
        o("v_add_u32 v13, s52, v3"); o("v_lshlrev_b32 v13, 11, v13"); o("s_lshl_b32 s55, s54, 1"); o("v_add_u32 v13, s55, v13")
        o("v_lshlrev_b32 v14, 3, v2"); o("v_add_u32 v14, v14, v13")
        o("v_and_b32 v15, 1, v2"); o("v_lshlrev_b32 v15, 5, v15"); o("v_lshrrev_b32 v12, 1, v2"); o("v_lshlrev_b32 v12, 4, v12"); o("v_add3_u32 v15, v13, v15, v12")
        if not g5:
            self.srd(R_X, P_X, 2048*1024*2)
            for rb in range(2):
                o(f"s_mov_b32 s56, {rb*16*2048}")
                for cb in range(4):
                    d = RES + (rb * 4 + cb) * 2
                    o(f"buffer_load_dwordx2 v[{d}:{d+1}], v14, s[{R_X}:{R_X+3}], s56 offen offset:{cb*32}")
        else:
            for rb in range(2):
                o(f"s_mov_b32 s56, {H_OFF + rb*16*2048}")
                for cb in range(4):
                    d = RES + (rb * 4 + cb) * 2
                    o(f"buffer_load_dwordx2 v[{d}:{d+1}], v14, {WSR}, s56 offen offset:{cb*32} sc1")
        o("s_mov_b32 s57, s52"); o("s_mov_b32 s58, s53")
        def reads(st, j):
            xs = [f"ds_read_b128 {fx(st, r)}, v{VX0+j} offset:{r*2048}" for r in range(2)]
            W = [[f"ds_read_b64_tr_b16 {fw(st, cb, h)}, v{VW0+cb} offset:{j*4096+h*512}" for h in range(2)] for cb in range(4)]
            return [xs[0]] + W[0] + [xs[1]] + W[1] + W[2] + W[3]
        def mfmas(st):
            return [f"v_mfma_f32_16x16x32_bf16 {vr(acc(rb, cb), 4)}, {fw(st, cb)}, {fx(st, rb)}, {vr(acc(rb, cb), 4)}" for cb in range(4) for rb in range(2)]
        self.stamp('c')
        self.cons_loop(f"g{which}_loop", NK, reads, mfmas,
                       [([VX0, VX0 + 1], XNS, 8192, 65, 66), ([VW0 + i for i in range(4)], WNS, 16384, 67, 62)], span0=6, span1=8)
        self.stamp('c')
        o("s_waitcnt vmcnt(0)")
        for rb in range(2):
            for cb in range(4):
                d = RES + (rb * 4 + cb) * 2; A = acc(rb, cb)
                o(f"v_lshlrev_b32 v64, 16, v{d}"); o(f"v_and_b32 v65, 0xffff0000, v{d}"); o(f"v_lshlrev_b32 v66, 16, v{d+1}"); o(f"v_and_b32 v67, 0xffff0000, v{d+1}")
                o(f"v_pk_add_f32 v[{A}:{A+1}], v[{A}:{A+1}], v[64:65]"); o(f"v_pk_add_f32 v[{A+2}:{A+3}], v[{A+2}:{A+3}], v[66:67]")
        if g5:
            self.srd(R_M, P_OUT, 2048*1024*2)
        for rb in range(2):
            for cp in range(2):
                A = acc(rb, 2 * cp); B = A + 4; P = 68 + (rb * 2 + cp) * 4
                o(f"v_cvt_pk_bf16_f32 v{P}, v{A}, v{A+1}"); o(f"v_cvt_pk_bf16_f32 v{P+1}, v{A+2}, v{A+3}")
                o(f"v_cvt_pk_bf16_f32 v{P+2}, v{B}, v{B+1}"); o(f"v_cvt_pk_bf16_f32 v{P+3}, v{B+2}, v{B+3}")
                o(f"v_permlane16_swap_b32 v{P}, v{P+2}"); o(f"v_permlane16_swap_b32 v{P+1}, v{P+3}")
                if g5:
                    o(f"s_mov_b32 s56, {rb*16*2048}")
                    o(f"buffer_store_dwordx4 v[{P}:{P+3}], v15, s[{R_M}:{R_M+3}], s56 offen offset:{cp*64}")
                else:
                    o(f"s_mov_b32 s56, {H_OFF + rb*16*2048}")
                    o(f"buffer_store_dwordx4 v[{P}:{P+3}], v15, {WSR}, s56 offen offset:{cp*64} sc1")
        if not g5:
            SUM = [84, 85]; TMP = [86, 87]; M2 = [88, 89]
            for rb in range(2):
                A = acc(rb, 0)
                o(f"v_pk_add_f32 v[90:91], v[{A}:{A+1}], v[{A+2}:{A+3}]")
                for e in range(4, 16, 2): o(f"v_pk_add_f32 v[90:91], v[90:91], v[{A+e}:{A+e+1}]")
                o(f"v_add_f32 v{SUM[rb]}, v90, v91")
            self.bfly("v_add_f32", SUM, TMP, bits=(5, 4))
            o(f"s_mov_b32 s56, {f2u(-1/64.)}")
            for rb in range(2):
                A = acc(rb, 0)
                o(f"v_mul_f32 v92, s56, v{SUM[rb]}")
                for e in range(0, 16, 2): o(f"v_pk_add_f32 v[{A+e}:{A+e+1}], v[{A+e}:{A+e+1}], v[92:93] op_sel_hi:[1,0]")
                o(f"v_pk_mul_f32 v[90:91], v[{A}:{A+1}], v[{A}:{A+1}]")
                for e in range(2, 16, 2): o(f"v_pk_fma_f32 v[90:91], v[{A+e}:{A+e+1}], v[{A+e}:{A+e+1}], v[90:91]")
                o(f"v_add_f32 v{M2[rb]}, v90, v91")
            self.bfly("v_add_f32", M2, TMP, bits=(5, 4))
            o("v_add_u32 v12, s57, v3"); o("v_lshlrev_b32 v12, 7, v12")
            o("s_lshl_b32 s56, s58, 1"); o(f"s_lshr_b32 s55, s{S_WAVE}, 1"); o("s_add_u32 s56, s56, s55"); o("s_lshl_b32 s56, s56, 3"); o(f"s_add_u32 s56, s56, {ST2_OFF}")
            o("s_mov_b64 s[54:55], exec"); o("s_mov_b64 exec, 0xffff")
            for rb in range(2):
                o(f"v_mov_b32 v90, v{SUM[rb]}"); o(f"v_mov_b32 v91, v{M2[rb]}")
                o(f"buffer_store_dwordx2 v[90:91], v12, {WSR}, s56 offen offset:{rb*16*128} sc1")
                if rb == 0: o("s_nop 1")
            o("s_mov_b64 exec, s[54:55]")
            o("s_waitcnt vmcnt(0)")
            self.stamp('c')
            o("s_barrier")
        else:
            pass

    def g2_producer(self, q, rings):
        o = self.o
        X, W = rings
        self.poll([(F_G1, S_I, 0xffff)])
        o("s_barrier")
        for st in range(X.ns): self.ring_issue(q, X, st)
        hooks = {}
        if self.upto >= 3:
            hooks[1] = lambda: q.wait('C3st')
            hooks[2] = lambda: self.flag_store(F_S3C, S_M, S_I)
        self.prod_loop(q, 16, [X, W], hooks)
        r3 = None
        if self.upto >= 3:
            lab_idle = self.nl("idle"); lab_j = self.nl("join")
            o(f"s_cmp_eq_u32 s{S_JS}, 7"); o(f"s_cbranch_scc1 {lab_j}")
            X3, W3 = self.g34_setup()
            for st in range(W3.ns): self.ring_issue(q, W3, st)
            self.lab(lab_j)
            r3 = (X3, W3)
        o("s_barrier")
        self.flag_store(F_G2, S_I, S_M)
        self.stamp('p')
        return r3

    ZS = 16384; XR3 = 49152; WR3 = 98304
    A2, B2, CS3, A3B, BSP = 0, 512, 1024, 2048, 3072
    def gelu_many(self, xs, ts, c1, c2, one):
        o = self.o
        for x, t in zip(xs, ts): o(f"v_mul_f32 v{t}, v{x}, v{x}")
        for x, t in zip(xs, ts): o(f"v_fma_f32 v{t}, v{t}, v{c2}, v{c1}")
        for x, t in zip(xs, ts): o(f"v_mul_f32 v{t}, v{t}, v{x}")
        for x, t in zip(xs, ts): o(f"v_exp_f32 v{t}, v{t}")
        for x, t in zip(xs, ts): o(f"v_add_f32 v{t}, 1.0, v{t}")
        for x, t in zip(xs, ts): o(f"v_rcp_f32 v{t}, v{t}")
        for x, t in zip(xs, ts): o(f"v_mul_f32 v{x}, v{x}, v{t}")

    RS = 4096
    def gelu_pk_many(self, xs, ts, c1, c2, one):
        o = self.o
        P = lambda r: f"v[{r}:{r+1}]"
        for x, t in zip(xs, ts): o(f"v_pk_mul_f32 {P(t)}, {P(x)}, {P(x)}")
        for x, t in zip(xs, ts): o(f"v_pk_fma_f32 {P(t)}, {P(t)}, {P(c2)}, {P(c1)} op_sel_hi:[1,0,0]")
        for x, t in zip(xs, ts): o(f"v_pk_mul_f32 {P(t)}, {P(t)}, {P(x)}")
        for x, t in zip(xs, ts): o(f"v_exp_f32 v{t}, v{t}"); o(f"v_exp_f32 v{t+1}, v{t+1}")
        for x, t in zip(xs, ts): o(f"v_pk_add_f32 {P(t)}, {P(t)}, {P(one)} op_sel_hi:[1,0]")
        for x, t in zip(xs, ts): o(f"v_rcp_f32 v{t}, v{t}"); o(f"v_rcp_f32 v{t+1}, v{t+1}")
        for x, t in zip(xs, ts): o(f"v_pk_mul_f32 {P(x)}, {P(x)}, {P(t)}")

    def g34_consumer(self):
        o = self.o
        ACC = 16; VX0 = 8; VWN = 144
        def acc(rb, cb): return ACC + (rb * 4 + cb) * 4
        def fx(st, f): return ar(st * 32 + f * 4, 4)
        def fw(st, cb, h=None):
            b = st * 32 + 16 + cb * 4
            return ar(b, 4) if h is None else ar(b + 2 * h, 2)
        o(f"s_and_b32 s50, s{S_WAVE}, 1"); o("s_lshl_b32 s50, s50, 13")
        self.addr_k(VX0, self.XR3, 50)
        o(f"s_lshr_b32 s51, s{S_WAVE}, 1"); o("s_lshl_b32 s51, s51, 13")
        self.addr_n([VWN + i for i in range(4)], [0, 1, 2, 3], self.WR3, 51)
        o(f"s_and_b32 s50, s{S_WAVE}, 1"); o(f"s_lshr_b32 s51, s{S_WAVE}, 1")
        o("v_lshlrev_b32 v7, 8, v3"); o("s_lshl_b32 s52, s50, 14"); o(f"s_add_u32 s52, s52, {self.ZS}"); o("v_add_u32 v7, s52, v7")
        o("v_and_b32 v12, 1, v2"); o("v_lshlrev_b32 v12, 3, v12"); o("v_add_u32 v7, v7, v12")
        o("v_lshrrev_b32 v12, 1, v2"); o("s_lshl_b32 s53, s51, 3"); o("v_or_b32 v12, s53, v12")
        for cb in range(4):
            o(f"v_or_b32 v14, {2*cb}, v12"); o("v_xor_b32 v14, v14, v3"); o("v_lshlrev_b32 v14, 4, v14"); o(f"v_add_u32 v{152+cb}, v14, v7")
        o("v_lshlrev_b32 v156, 2, v3"); o("s_lshl_b32 s52, s50, 8"); o("v_add_u32 v156, s52, v156")
        o("v_lshlrev_b32 v157, 4, v2"); o("s_lshl_b32 s52, s51, 8"); o("v_add_u32 v157, s52, v157")
        def reads(st, j):
            xs = [f"ds_read_b128 {fx(st, r)}, v{VX0+j} offset:{r*2048}" for r in range(4)]
            W = [[f"ds_read_b64_tr_b16 {fw(st, cb, h)}, v{VWN+cb} offset:{j*4096+h*512}" for h in range(2)] for cb in range(4)]
            return [xs[0]] + W[0] + [xs[1], xs[2], xs[3]] + W[1] + W[2] + W[3]
        def mf(st, zero=False):
            return [f"v_mfma_f32_16x16x32_bf16 {vr(acc(rb, cb), 4)}, {fw(st, cb)}, {fx(st, rb)}, {'0' if zero else vr(acc(rb, cb), 4)}" for cb in range(4) for rb in range(4)]
        adv = [([VX0, VX0 + 1], 3, 16384, 65, 66), ([VWN + i for i in range(4)], 4, 16384, 67, 62)]
        def fold(csoff):
            for cb in range(4): o(f"ds_read_b128 v[{80+4*cb}:{83+4*cb}], v157 offset:{self.CS3 + csoff + 16*cb*4}")
            for rb in range(4):
                o(f"ds_read_b32 v{96+4*rb}, v156 offset:{self.A2 + rb*64}"); o(f"ds_read_b32 v{98+4*rb}, v156 offset:{self.B2 + rb*64}")
            o("s_waitcnt lgkmcnt(0)")
        def fold_rb(rb):
            a = 96 + 4 * rb; b = a + 2
            for cb in range(4):
                C = 80 + 4 * cb
                for e in (0, 2): o(f"v_pk_mul_f32 v[{112+4*cb+e}:{113+4*cb+e}], v[{C+e}:{C+e+1}], v[{b}:{b+1}] op_sel_hi:[1,0]")
            for cb in range(4):
                A = acc(rb, cb)
                for e in (0, 2): o(f"v_pk_fma_f32 v[{A+e}:{A+e+1}], v[{A+e}:{A+e+1}], v[{a}:{a+1}], v[{112+4*cb+e}:{113+4*cb+e}] op_sel_hi:[1,0,1]")
        def dump_rb(rb):
            for cb in range(4):
                A = acc(rb, cb)
                o(f"v_cvt_pk_bf16_f32 v{A}, v{A}, v{A+1}"); o(f"v_cvt_pk_bf16_f32 v{A+1}, v{A+2}, v{A+3}")
                o(f"ds_write_b64 v{152+cb}, v[{A}:{A+1}] offset:{rb*4096}")
        self.cons_loop("g3a_loop", 16, reads, mf, adv, first_zero=True)
        self.stamp('c')
        fold(512)
        for rb in (2, 3): fold_rb(rb); dump_rb(rb)
        o("s_waitcnt lgkmcnt(0)"); o("s_barrier")
        C1 = -2.0 * 0.7978845608028654 * LOG2E; C2 = C1 * 0.044715
        o(f"s_mov_b32 s52, {f2u(C1)}"); o("v_mov_b32 v128, s52"); o(f"s_mov_b32 s52, {f2u(C2)}"); o("v_mov_b32 v130, s52"); o("v_mov_b32 v132, 1.0")
        o("s_mov_b32 s54, 0x3f803f80")
        for rb in (0, 1):
            fold_rb(rb)
            A = acc(rb, 0)
            self.gelu_pk_many([A + 2 * i for i in range(8)], [112 + 2 * i for i in range(8)], 128, 130, 132)
            dump_rb(rb)
            o(f"v_mov_b32 v{134+2*rb}, 0"); o(f"v_mov_b32 v{135+2*rb}, 0")
            for cb in range(4):
                for e in range(2):
                    o(f"v_dot2c_f32_bf16 v{134+2*rb}, s54, v{A+4*cb+e}"); o(f"v_dot2c_f32_bf16 v{135+2*rb}, v{A+4*cb+e}, v{A+4*cb+e}")
        self.bfly("v_add_f32", [134, 135, 136, 137], [112, 113, 114, 115], bits=(5, 4))
        o("v_lshlrev_b32 v12, 2, v156"); o(f"s_lshr_b32 s51, s{S_WAVE}, 1"); o("s_lshl_b32 s51, s51, 3"); o("v_add_u32 v12, s51, v12")
        o("s_mov_b64 s[54:55], exec"); o("s_mov_b64 exec, 0xffff")
        for rb in (0, 1): o(f"ds_write_b64 v12, v[{134+2*rb}:{135+2*rb}] offset:{self.RS + rb*256}")
        o("s_mov_b64 exec, s[54:55]")
        self.stamp('c')
        self.cons_loop("g3b_loop", 16, reads, mf, adv, cont=True, first_zero=True)
        self.stamp('c')
        fold(0)
        for rb in range(4): fold_rb(rb); dump_rb(rb)
        self.stamp('c')
        self.cons_loop("g4_loop", 32, reads, mf, adv, cont=True, first_zero=True)
        self.stamp('c')
        o("s_barrier")
        for rb in range(4): o(f"ds_read_b32 v{96+2*rb}, v156 offset:{self.BSP + rb*64}")
        for rb in range(4):
            for cb in range(4):
                o(f"ds_read_b64 v[{80 if False else 0}:{1}], v0".replace("v[0:1], v0", f"a[{(rb*4+cb)*2}:{(rb*4+cb)*2+1}], v{152+cb} offset:{rb*4096}"))
        o(f"s_and_b32 s50, s{S_WAVE}, 1"); o(f"s_lshr_b32 s51, s{S_WAVE}, 1")
        o(f"s_lshl_b32 s52, s{S_I}, 7"); o("s_lshl_b32 s53, s50, 6"); o("s_add_u32 s52, s52, s53")
        o("v_add_u32 v12, s52, v3"); o("s_mov_b32 s53, 3584"); o("v_mul_lo_u32 v12, v12, s53")
        o("v_and_b32 v13, 1, v2"); o("v_lshlrev_b32 v13, 5, v13"); o("v_lshrrev_b32 v14, 1, v2"); o("v_lshlrev_b32 v14, 4, v14"); o("v_add3_u32 v12, v12, v13, v14")
        o(f"s_lshl_b32 s52, s{S_J3}, 8"); o("s_lshl_b32 s53, s51, 7"); o("s_add_u32 s52, s52, s53"); o(f"s_add_u32 s52, s52, {U_OFF}")
        o("s_waitcnt lgkmcnt(0)")
        for rb in range(4):
            for cb in range(4):
                zi = (rb * 4 + cb) * 2
                o(f"v_accvgpr_read_b32 v{112+2*cb}, a{zi}"); o(f"v_accvgpr_read_b32 v{113+2*cb}, a{zi+1}")
            for cb in range(4):
                for e in range(2):
                    o(f"v_lshlrev_b32 v{80+4*cb+2*e}, 16, v{112+2*cb+e}"); o(f"v_and_b32 v{81+4*cb+2*e}, 0xffff0000, v{112+2*cb+e}")
            A = acc(rb, 0)
            for e in range(0, 16, 2): o(f"v_pk_add_f32 v[{A+e}:{A+e+1}], v[{A+e}:{A+e+1}], v[{96+2*rb}:{97+2*rb}] op_sel_hi:[1,0]")
            for e in range(0, 16, 2): o(f"v_pk_mul_f32 v[{A+e}:{A+e+1}], v[{A+e}:{A+e+1}], v[{80+e}:{81+e}]")
            o(f"s_add_u32 s53, s52, {rb*16*3584}")
            for cp in range(2):
                A = acc(rb, 2 * cp); B = acc(rb, 2 * cp + 1); P = 120 + (rb & 1) * 8 + cp * 4
                o(f"v_cvt_pk_bf16_f32 v{P}, v{A}, v{A+1}"); o(f"v_cvt_pk_bf16_f32 v{P+1}, v{A+2}, v{A+3}")
                o(f"v_cvt_pk_bf16_f32 v{P+2}, v{B}, v{B+1}"); o(f"v_cvt_pk_bf16_f32 v{P+3}, v{B+2}, v{B+3}")
                o(f"v_permlane16_swap_b32 v{P}, v{P+2}"); o(f"v_permlane16_swap_b32 v{P+1}, v{P+3}")
                o(f"buffer_store_dwordx4 v[{P}:{P+3}], v12, {WSR}, s53 offen offset:{cp*64} sc1")
        o("s_waitcnt vmcnt(0)")
        self.stamp('c')
        o("s_barrier")

    def g34_setup(self):
        o = self.o
        p = S_P
        X = Ring("c", 3, self.XR3, 16384, R_WS, 128, "sc1"); X.soff0 = H_OFF
        W = Ring("d", 4, self.WR3, 16384, R_W, 64 * 7168); W.soff0 = 3584
        self.srd(R_W, P_WIN, 1024*3584*2)
        o(f"s_lshl_b32 s52, s{S_I}, 7"); o(f"s_lshl_b32 s53, s{p}, 5"); o("s_add_u32 s52, s52, s53")
        for t in range(4): self.voff_k(30 + t, 52, 8 * t, t, ld_shift=11)
        for t in range(4): self.voff_k(38 + t, 52, 8 * t, t, ld_shift=12)
        o(f"s_lshl_b32 s53, s{S_J3}, 8"); o(f"s_lshr_b32 s54, s{p}, 1"); o("s_lshl_b32 s54, s54, 7"); o("s_add_u32 s53, s53, s54")
        o(f"s_and_b32 s56, s{p}, 1"); o(f"s_mul_i32 s56, s56, {32*7168}"); o("s_add_u32 s53, s53, s56")
        o("s_mov_b32 s55, 7168")
        for t in range(4): self.voff_n(34 + t, t, 53, 55)
        o(f"s_lshl_b32 s53, s{S_J3}, 8"); o(f"s_lshr_b32 s54, s{p}, 1"); o("s_lshl_b32 s54, s54, 7"); o("s_add_u32 s53, s53, s54")
        o(f"s_and_b32 s56, s{p}, 1"); o(f"s_mul_i32 s56, s56, {32*3584}"); o("s_add_u32 s53, s53, s56")
        o("s_mov_b32 s55, 3584")
        for t in range(4): self.voff_n(42 + t, t, 53, 55)
        o(f"s_lshl_b32 s58, s{p}, 12")
        X.instrs = [(58, t * 1024, 30 + t) for t in range(4)]
        W.instrs = [(58, t * 1024, 34 + t) for t in range(4)]
        self.rot_compute(62, 16, '34'); self.ring_init(X, 60, 16, 62); self.ring_init(W, 61, 16, 62)
        return X, W

    def g34_producer(self, q, X, W):
        o = self.o
        p = S_P
        self.poll([(F_G2, S_I, 0xffff), (F_S3C, S_M, 0xffff)])
        o("s_barrier")
        for st in range(X.ns): self.ring_issue(q, X, st)
        C1 = -2.0 * 0.7978845608028654 * LOG2E
        C2 = C1 * 0.044715
        hooks = {}
        def ln2_loads():
            o(f"s_lshl_b32 s52, s{S_I}, 7"); o(f"s_lshl_b32 s53, s{p}, 5"); o("s_add_u32 s52, s52, s53"); o("s_lshl_b32 s52, s52, 7"); o(f"s_add_u32 s52, s52, {ST2_OFF}")
            o("v_lshlrev_b32 v50, 6, v1")
            for t in range(4):
                o(f"buffer_load_dwordx4 v[{64+4*t}:{67+4*t}], v50, {WSR}, s52 offen offset:{16*t} sc1"); q.issue('g2s')
            o(f"s_lshl_b32 s53, s{S_M}, 14"); o(f"s_lshl_b32 s54, s{p}, 8"); o("s_add_u32 s53, s53, s54"); o(f"s_add_u32 s53, s53, {CS3_OFF}")
            o("v_lshlrev_b32 v51, 10, v4"); o("v_and_b32 v52, 15, v1"); o("v_lshlrev_b32 v52, 4, v52"); o("v_add_u32 v51, v51, v52")
            for t in range(4):
                o(f"buffer_load_dwordx4 v[{80+4*t}:{83+4*t}], v51, {WSR}, s53 offen sc1"); q.issue('g2s')
                if t < 3: o("s_add_u32 s53, s53, 4096")
            self.srd(R_M, P_BSP, 4096)
            o(f"s_lshl_b32 s52, s{S_I}, 7"); o(f"s_lshl_b32 s53, s{p}, 5"); o("s_add_u32 s52, s52, s53"); o("s_lshl_b32 s52, s52, 1")
            o("v_lshlrev_b32 v53, 1, v1")
            o(f"buffer_load_ushort v96, v53, s[{R_M}:{R_M+3}], s52 offen"); q.issue('g2s')
        def ln2_fin():
            q.wait('g2s')
            o("v_add_f32 v97, v64, v66")
            for t in range(2, 8): o(f"v_add_f32 v97, v97, v{64+2*t}")
            o("v_add_f32_dpp v97, v97, v97 quad_perm:[1,0,3,2] row_mask:0xf bank_mask:0xf")
            o(f"s_mov_b32 s52, {f2u(1/1024.)}"); o("v_mul_f32 v97, s52, v97")
            o(f"s_mov_b32 s53, {f2u(1/64.)}"); o(f"s_mov_b32 s54, {f2u(64.)}")
            o("v_mov_b32 v98, 0")
            for t in range(8):
                o(f"v_fma_f32 v99, v{64+2*t}, s53, -v97")
                o("v_mul_f32 v99, v99, v99"); o(f"v_fma_f32 v99, v99, s54, v{65+2*t}"); o("v_add_f32 v98, v98, v99")
            o("v_add_f32_dpp v98, v98, v98 quad_perm:[1,0,3,2] row_mask:0xf bank_mask:0xf")
            o(f"s_mov_b32 s53, {f2u(1e-5)}"); o("v_mov_b32 v99, s53"); o("v_fmac_f32 v99, s52, v98"); o("v_rsq_f32 v98, v99")
            o("v_mul_f32 v97, v97, v98"); o("v_sub_f32 v97, 0, v97")
            o("v_and_b32 v99, 1, v1"); o("v_cmp_eq_u32 vcc, 1, v99"); o("v_cndmask_b32 v98, v98, v97, vcc")
            o("v_lshrrev_b32 v100, 1, v1"); o("v_lshlrev_b32 v100, 2, v100"); o("v_lshlrev_b32 v99, 9, v99"); o("v_add_u32 v100, v100, v99")
            o(f"s_lshl_b32 s52, s{p}, 7"); o("v_add_u32 v100, s52, v100")
            o(f"ds_write_b32 v100, v98 offset:{self.A2}")
            for e in range(4):
                o(f"v_add_f32 v{80+e}, v{80+e}, v{84+e}"); o(f"v_add_f32 v{88+e}, v{88+e}, v{92+e}")
            for e in range(4): o(f"v_add_f32 v{80+e}, v{80+e}, v{88+e}")
            self.bfly("v_add_f32", [80, 81, 82, 83], [84, 85, 86, 87], bits=(5, 4))
            o(f"s_lshl_b32 s54, s{p}, 8"); o("v_and_b32 v52, 15, v1"); o("v_lshlrev_b32 v52, 4, v52"); o("v_add_u32 v52, s54, v52")
            o(f"ds_write_b128 v52, v[80:83] offset:{self.CS3}")
            o("v_lshlrev_b32 v96, 16, v96"); o("v_lshlrev_b32 v53, 2, v1"); o(f"s_lshl_b32 s54, s{p}, 7"); o("v_add_u32 v53, s54, v53")
            o("s_mov_b64 s[54:55], exec"); o("s_mov_b64 exec, 0xffffffff")
            o(f"ds_write_b32 v53, v96 offset:{self.BSP}")
            o("s_mov_b64 exec, s[54:55]")
            o("s_waitcnt lgkmcnt(0)")
        hooks[0] = ln2_loads
        hooks[3] = ln2_fin
        CC1, CC2, ONE = 46, 48, 50
        def z2_help():
            o(f"s_mov_b32 s52, {f2u(C1)}"); o(f"v_mov_b32 v{CC1}, s52"); o(f"s_mov_b32 s52, {f2u(C2)}"); o(f"v_mov_b32 v{CC2}, s52"); o(f"v_mov_b32 v{ONE}, 1.0")
            o(f"s_and_b32 s52, s{p}, 1"); o("s_lshl_b32 s52, s52, 14"); o(f"s_add_u32 s52, s52, {self.ZS + 32*256}")
            o(f"s_lshr_b32 s53, s{p}, 1"); o("s_lshl_b32 s53, s53, 3")
            o("v_or_b32 v62, s53, v3"); o("v_xor_b32 v62, v62, v2")
            o("v_lshlrev_b32 v63, 8, v2"); o("v_add_u32 v63, s52, v63")
            o("v_lshlrev_b32 v60, 4, v62"); o("v_add_u32 v60, v60, v63")
            o("v_xor_b32 v61, 8, v62"); o("v_lshlrev_b32 v61, 4, v61"); o("v_add_u32 v61, v61, v63")
            o("s_barrier")
            for it in range(4): o(f"ds_read_b128 v[{64+4*it}:{67+4*it}], v{60+(it&1)} offset:{it*2048}")
            o("s_mov_b32 s54, 0x3f803f80")
            o("s_waitcnt lgkmcnt(0)")
            for it in range(4):
                y = 96 + 8 * it
                for e in range(4):
                    o(f"v_lshlrev_b32 v{y+2*e}, 16, v{64+4*it+e}"); o(f"v_and_b32 v{y+2*e+1}, 0xffff0000, v{64+4*it+e}")
            for half in range(2):
                y = 96 + 16 * half
                self.gelu_pk_many([y + 2 * i for i in range(8)], [128 + 2 * i for i in range(8)], CC1, CC2, ONE)
            for it in range(4):
                y = 96 + 8 * it
                for e in range(4): o(f"v_cvt_pk_bf16_f32 v{64+4*it+e}, v{y+2*e}, v{y+2*e+1}")
                o(f"ds_write_b128 v{60+(it&1)}, v[{64+4*it}:{67+4*it}] offset:{it*2048}")
                o(f"v_mov_b32 v{80+2*it}, 0"); o(f"v_mov_b32 v{81+2*it}, 0")
                for e in range(4):
                    o(f"v_dot2c_f32_bf16 v{80+2*it}, s54, v{64+4*it+e}"); o(f"v_dot2c_f32_bf16 v{81+2*it}, v{64+4*it+e}, v{64+4*it+e}")
            for ctl in ("quad_perm:[1,0,3,2]", "quad_perm:[2,3,0,1]", "row_half_mirror"):
                for r in range(80, 88): o(f"v_add_f32_dpp v{r}, v{r}, v{r} {ctl} row_mask:0xf bank_mask:0xf")
            o(f"s_and_b32 s52, s{p}, 1"); o("s_lshl_b32 s52, s52, 10"); o(f"s_lshr_b32 s53, s{p}, 1"); o("s_lshl_b32 s53, s53, 3"); o("s_add_u32 s52, s52, s53")
            o("v_lshlrev_b32 v62, 4, v2"); o("v_add_u32 v62, s52, v62")
            o("v_cmp_eq_u32 vcc, 0, v3"); o("s_and_saveexec_b64 s[54:55], vcc")
            for it in range(4): o(f"ds_write_b64 v62, v[{80+2*it}:{81+2*it}] offset:{self.RS + 32*16 + it*128}")
            o("s_mov_b64 exec, s[54:55]")
            o("s_waitcnt lgkmcnt(0)")
        def z2_pub():
            o(f"s_lshl_b32 s52, s{p}, 9"); o("v_lshrrev_b32 v62, 1, v1"); o("v_lshlrev_b32 v62, 4, v62"); o("v_and_b32 v63, 1, v1"); o("v_lshlrev_b32 v63, 2, v63")
            o("v_add3_u32 v62, v62, v63, s52")
            o(f"ds_read_b32 v64, v62 offset:{self.RS}"); o(f"ds_read_b32 v65, v62 offset:{self.RS + 8}")
            o(f"s_lshl_b32 s52, s{S_I}, 7"); o(f"s_lshl_b32 s53, s{p}, 5"); o("s_add_u32 s52, s52, s53"); o("s_lshl_b32 s52, s52, 3"); o(f"s_add_u32 s52, s52, {ST3_OFF}")
            o("v_lshlrev_b32 v63, 2, v1")
            o("s_waitcnt lgkmcnt(0)"); o("v_add_f32 v64, v64, v65")
            o(f"buffer_atomic_add_f32 v64, v63, {WSR}, s52 offen"); q.issue('z2at')
        def z2_gather():
            o(f"s_lshl_b32 s52, s{S_I}, 7"); o(f"s_lshl_b32 s53, s{p}, 5"); o("s_add_u32 s52, s52, s53"); o("s_lshl_b32 s52, s52, 3"); o(f"s_add_u32 s52, s52, {ST3_OFF}")
            o("v_and_b32 v63, 31, v1"); o("v_lshlrev_b32 v63, 3, v63")
            o(f"buffer_load_dwordx2 v[64:65], v63, {WSR}, s52 offen sc1"); q.issue('z2g')
        def z2_ab():
            q.wait('z2g')
            o(f"s_mov_b32 s52, {f2u(1/1792.)}"); o(f"s_mov_b32 s53, {f2u(1e-5)}")
            o("v_mul_f32 v64, s52, v64"); o("v_mul_f32 v65, s52, v65"); o("v_fma_f32 v65, -v64, v64, v65"); o("v_max_f32 v65, 0, v65"); o("v_add_f32 v65, s53, v65")
            o("v_rsq_f32 v66, v65"); o("v_mul_f32 v67, v64, v66"); o("v_sub_f32 v67, 0, v67")
            o("v_and_b32 v63, 31, v1"); o("v_lshlrev_b32 v63, 3, v63"); o(f"s_lshl_b32 s52, s{p}, 8"); o("v_add_u32 v63, s52, v63")
            o(f"ds_write_b64 v63, v[66:67] offset:{self.A3B}")
            o("v_and_b32 v62, 15, v1"); o("v_xor_b32 v62, v62, v4")
            o(f"s_lshl_b32 s52, s{p}, 13"); o(f"s_add_u32 s52, s52, {self.ZS}"); o("v_lshlrev_b32 v63, 8, v4"); o("v_add_u32 v63, s52, v63")
            for j in range(4):
                o(f"v_xor_b32 v{56+j}, {4*j}, v62"); o(f"v_lshlrev_b32 v{56+j}, 4, v{56+j}"); o(f"v_add_u32 v{56+j}, v{56+j}, v63")
            o(f"s_lshl_b32 s52, s{p}, 8"); o("v_lshlrev_b32 v60, 3, v4"); o("v_add_u32 v60, s52, v60")
            o(f"s_lshl_b32 s52, s{S_I}, 7"); o(f"s_lshl_b32 s53, s{p}, 5"); o("s_add_u32 s52, s52, s53"); o("v_add_u32 v61, s52, v4"); o("s_mov_b32 s53, 3584"); o("v_mul_lo_u32 v61, v61, s53")
            o("v_and_b32 v62, 15, v1"); o("v_lshlrev_b32 v62, 4, v62"); o("v_add_u32 v61, v61, v62")
            o(f"s_lshl_b32 s63, s{S_J3}, 8"); o(f"s_add_u32 s63, s63, {Z2T_OFF}")
            o("s_waitcnt lgkmcnt(0)")
        def z2_norm(its):
            def f():
                for it in its:
                    d = 64 + (it & 1) * 16
                    o(f"ds_read_b128 v[{d}:{d+3}], v{56+(it&3)} offset:{it*1024}"); o(f"ds_read_b64 v[{d+4}:{d+5}], v60 offset:{self.A3B + it*32}")
                o("s_waitcnt lgkmcnt(0)")
                for it in its:
                    d = 64 + (it & 1) * 16; y = d + 6
                    for e in range(4):
                        o(f"v_lshlrev_b32 v{y+2*e}, 16, v{d+e}"); o(f"v_and_b32 v{y+2*e+1}, 0xffff0000, v{d+e}")
                    for e in range(8): o(f"v_fma_f32 v{y+e}, v{y+e}, v{d+4}, v{d+5}")
                    for e in range(4): o(f"v_cvt_pk_bf16_f32 v{d+e}, v{y+2*e}, v{y+2*e+1}")
                    o(f"s_add_u32 s53, s63, {it*4*3584}")
                    o(f"buffer_store_dwordx4 v[{d}:{d+3}], v61, {WSR}, s53 offen sc1"); q.issue('z2st')
            return f
        def seq(*fs):
            def f():
                for x in fs: x()
            return f
        hooks[15] = z2_help
        hooks[16] = z2_pub
        hooks[18] = lambda: q.wait('z2at')
        hooks[19] = lambda: self.flag_store(F_Z2S, S_I, S_M)
        hooks[21] = lambda: self.poll([(F_Z2S, S_I, 0x7f7f)])
        hooks[22] = z2_gather
        hooks[23] = seq(z2_ab, z2_norm([0, 1]))
        hooks[24] = z2_norm([2, 3]); hooks[25] = z2_norm([4, 5]); hooks[26] = z2_norm([6, 7])
        hooks[27] = lambda: q.wait('z2st')
        pre_w = {28: lambda: self.flag_store(F_G3, S_M, S_I), 29: lambda: self.poll([(F_G3, S_M, 0xffff)])}
        def z1_chunk(it):
            def f():
                if it == 0:
                    o(f"s_lshl_b32 s52, s{p}, 13"); o(f"s_add_u32 s52, s52, {self.ZS}"); o("v_lshlrev_b32 v60, 4, v1"); o("v_add_u32 v60, s52, v60")
                o(f"ds_read_b128 v[64:67], v60 offset:{it*1024}"); o("s_waitcnt lgkmcnt(0)")
                y = 96
                for e in range(4):
                    o(f"v_lshlrev_b32 v{y+2*e}, 16, v{64+e}"); o(f"v_and_b32 v{y+2*e+1}, 0xffff0000, v{64+e}")
                self.gelu_many([y + e for e in range(8)], [12 + e for e in range(8)], CC1, CC2, ONE)
                for e in range(4): o(f"v_cvt_pk_bf16_f32 v{64+e}, v{y+2*e}, v{y+2*e+1}")
                o(f"ds_write_b128 v60, v[64:67] offset:{it*1024}")
                if it == 7: o("s_waitcnt lgkmcnt(0)")
            return f
        for it in range(8): hooks[34 + 2 * it] = z1_chunk(it)

        NT = 64
        SPR = Ring("e", 3, self.XR3, 16384, R_X, 128)
        ZR = Ring("f", 4, self.WR3, 16384, R_WS, 64 * 3584, "sc1"); ZR.soff0 = Z2T_OFF
        SPR.instrs = [(58, t * 1024, 38 + t) for t in range(4)]
        ZR.instrs = [(58, t * 1024, 42 + t) for t in range(4)]
        def xring(st): return X if st < 32 else SPR
        def wring(st): return W if st < 32 else ZR
        def tagx(st): return f"{xring(st).name}{st}"
        def tagw(st): return f"{wring(st).name}{st}"
        def issue_x(st):
            if st == 32:
                self.srd(R_X, P_WSP, 2048*2048*2); self.rot_compute(62, 32, '34'); self.ring_init(SPR, 60, 32, 62)
            self.ring_issue(q, xring(st), st)
        def issue_w(st):
            if st == 16:
                o(f"s_sub_u32 s61, s61, 3584"); W.soff0 = 0
            if st == 32:
                self.rot_compute(62, 32, '34'); self.ring_init(ZR, 61, 32, 62)
            self.ring_issue(q, wring(st), st)
        wsched = {}
        for st in range(4, NT): wsched.setdefault(st - 4, []).append(st)
        for st in (32, 33):
            wsched[st - 4].remove(st); wsched[30].insert(0, st)
        wsched[30].sort()
        q.wait(tagx(0)); q.wait(tagw(0))
        o("s_barrier")
        for kq in range(NT):
            if kq + 1 < NT:
                q.wait(tagx(kq + 1)); q.wait(tagw(kq + 1))
            o("s_barrier")
            if kq in (15, 21, 30, 31, 63): self.stamp('p')
            if kq + 3 < NT: issue_x(kq + 3)
            if kq in pre_w: pre_w[kq]()
            for st in wsched.get(kq, []): issue_w(st)
            if kq in hooks: hooks[kq]()
        return

    def g5_rings(self):
        o = self.o
        p = S_P
        W = Ring("h", 7, 49152, 16384, R_M, 64 * 2048)
        X = Ring("g", 4, 16384, 8192, R_WS, 128, "sc1"); X.soff0 = U_OFF
        self.srd(R_M, P_WOUT, 1792*1024*2)
        o(f"s_and_b32 s52, s{S_JS}, 1"); o("s_lshl_b32 s52, s52, 6"); o(f"s_lshl_b32 s53, s{S_I}, 7"); o("s_add_u32 s52, s52, s53")
        o(f"s_lshl_b32 s53, s{p}, 4"); o("s_add_u32 s52, s52, s53")
        o("s_mov_b32 s55, 3584")
        for t in range(2): self.voff_k(30 + t, 52, 8 * t, t, ld_s=55)
        o(f"s_lshr_b32 s53, s{S_JS}, 1"); o(f"s_lshl_b32 s54, s{S_H}, 2"); o("s_add_u32 s53, s53, s54"); o("s_lshl_b32 s53, s53, 8")
        o(f"s_lshr_b32 s54, s{p}, 1"); o("s_lshl_b32 s54, s54, 7"); o("s_add_u32 s53, s53, s54")
        o("s_mov_b32 s55, 2048")
        o(f"s_and_b32 s56, s{p}, 1"); o("s_lshl_b32 s56, s56, 16"); o("s_add_u32 s53, s53, s56")
        for t in range(4): self.voff_n(32 + t, t, 53, 55)
        o(f"s_lshl_b32 s58, s{p}, 11"); o(f"s_lshl_b32 s59, s{p}, 12")
        X.instrs = [(58, t * 1024, 30 + t) for t in range(2)]
        W.instrs = [(59, t * 1024, 32 + t) for t in range(4)]
        self.rot_compute(62, 28, '5'); self.ring_init(X, 60, 28, 62); self.ring_init(W, 61, 28, 62)
        return X, W

    def finish(self):
        o = self.o
        self.lab("mega_fin")
        if self.stamps:
            o("s_waitcnt lgkmcnt(0)")
            o(f"s_and_b32 s50, s{S_WAVE}, 3"); o("s_cmp_lg_u32 s50, 0"); o("s_cbranch_scc1 mega_fin2")
            o(f"s_lshr_b32 s50, s{S_WAVE}, 2"); o("s_lshl_b32 s50, s50, 7"); o("s_lshl_b32 s51, s2, 8"); o("s_add_u32 s50, s50, s51"); o(f"s_add_u32 s50, s50, {STAMP_OFF}")
            o("v_mov_b32 v4, 0")
            o("s_mov_b64 exec, 1")
            regs = [68, 69] + list(range(STAMP0, STAMP0 + 26)) + [68, 68, 68, 68]
            for i in range(0, 32, 4):
                for e in range(4): o(f"v_mov_b32 v{8+e}, s{regs[i+e]}")
                o(f"buffer_store_dwordx4 v[8:11], v4, {WSR}, s50 offen offset:{i*4}")
            self.lab("mega_fin2")
        o(f"s_cmp_lg_u32 s{S_WAVE}, 4"); o("s_cbranch_scc1 mega_done")
        o("s_cmp_lg_u32 s2, 0"); o("s_cbranch_scc1 mega_done")
        o("s_mov_b64 exec, 1")
        o(f"v_mov_b32 v8, s{S_TAG}"); o("v_mov_b32 v4, 0"); o(f"s_mov_b32 s50, {EPOCH_OFF}")
        o(f"buffer_store_dword v8, v4, {WSR}, s50 offen sc1")
        self.lab("mega_done")
        o("s_endpgm")

    def build(self):
        o = self.o
        self.prologue()
        o("v_lshrrev_b32 v2, 4, v1"); o("v_and_b32 v3, 15, v1")
        o(f"s_and_b32 s50, s{S_WAVE}, 1"); o("s_cmp_eq_u32 s50, 1"); o("s_cbranch_scc1 g1_c1")
        self.nstamp['c'] = 0
        self.g1_consumer(0)
        o("s_branch g1_cend")
        self.lab("g1_c1")
        self.nstamp['c'] = 0
        self.g1_consumer(1)
        self.lab("g1_cend")
        if self.upto >= 2:
            o("s_barrier")
            self.g25_consumer(2)
        if self.upto >= 3:
            o(f"s_cmp_eq_u32 s{S_JS}, 7"); o("s_cbranch_scc1 c_g5")
            o("s_barrier")
            self.g34_consumer()
            self.lab("c_g5")
            if self.upto >= 5:
                o("s_barrier")
                self.g25_consumer(5)
        o("s_branch mega_fin")
        self.lab("mega_prod")
        q, rings = self.g1_producer()
        if self.upto >= 2: r3 = self.g2_producer(q, rings)
        if self.upto >= 3:
            o(f"s_cmp_eq_u32 s{S_JS}, 7"); o("s_cbranch_scc1 p_idle")
            q2 = Q(self); q2.q = list(q.q)
            self.g34_producer(q2, r3[0], r3[1])
            if self.upto >= 5:
                X5, W5 = self.g5_rings()
                for st in range(W5.ns): self.ring_issue(q2, W5, st)
            o("s_barrier")
            o("s_barrier")
            self.flag_store(F_G4, S_I, S_M)
            self.stamp('p')
            if self.upto >= 5:
                o("s_branch p_g5")
                self.lab("p_idle")
                o("s_waitcnt vmcnt(0)")
                q3 = Q(self)
                X5, W5 = self.g5_rings()
                for st in range(W5.ns): self.ring_issue(q3, W5, st)
                self.lab("p_g5")
                self.poll([(F_G4, S_I, 0x7f7f)])
                o("s_barrier")
                for st in range(X5.ns): self.ring_issue(q3, X5, st)
                self.prod_loop(q3, 28, [X5, W5])
                self.stamp('p')
            else:
                o("s_branch mega_fin")
                self.lab("p_idle")
        o("s_branch mega_fin")
        self.finish()
        lines, n = fix(self.k.lines)
        self.k.lines = lines
        return self.k

if __name__ == "__main__":
    out = sys.argv[1] if len(sys.argv) > 1 else "mega.s"
    upto = 5
    for a in sys.argv[2:]:
        if a.startswith("upto="): upto = int(a[5:])
    g = Gen(stamps=("stamps" in sys.argv), upto=upto, opts=sys.argv[2:])
    k = g.build()
    open(out, "w").write(build_file([(k, (256, 1, 1), (512, 1, 1), 163840)]))
```
